```python
import torch

def _softmax(x, axis=-1):
    return torch.softmax(x, dim=axis)
def _gelu(x):
    return torch.nn.functional.gelu(x, approximate="tanh")
def _silu(x):
    return torch.nn.functional.silu(x)
def _sigmoid(x):
    return torch.sigmoid(x)
def _layernorm(x, axis=-1, eps=1e-5):
    m = x.mean(dim=axis, keepdim=True)
    v = x.var(dim=axis, keepdim=True, unbiased=False)
    return (x - m) / torch.sqrt(v + eps)
def _scatter_add(tgt, idx, src, axis=0):
    return tgt.clone().index_add_(axis, idx, src)
def _segment_sum(src, seg, n):
    out = torch.zeros((n,) + src.shape[1:], dtype=src.dtype)
    return out.index_add_(0, seg, src)
def _pad(x, pw):
    flat = tuple(v for pair in reversed(pw) for v in pair)
    return torch.nn.functional.pad(x, flat)

kernel_name = 'standalone__weight_only_int_quip__prompt'

def setup_inputs():

    _w = (lambda a: (lambda t: t.to(torch.bfloat16) if t.is_floating_point() else t)(torch.as_tensor(a)))
    B, S, D, F = 1, 2048, 640, 1536
    G = -1 if -1 > 0 else D
    D = (D // G) * G
    ng = D // G
    bits = 8 if 8 > 0 else 4
    qmax = 1 << bits
    qw = torch.randint(0, qmax, (D, F)).to(torch.int32)
    U, _ = (lambda *_a, **_k: torch.linalg.qr(*[torch.as_tensor(_x).float() for _x in _a], **_k))((lambda *s: torch.randn(*s, dtype=torch.bfloat16) * 0.05)(D, D))
    V, _ = (lambda *_a, **_k: torch.linalg.qr(*[torch.as_tensor(_x).float() for _x in _a], **_k))((lambda *s: torch.randn(*s, dtype=torch.bfloat16) * 0.05)(F, F))
    return {
        "x": _w((lambda *s: torch.randn(*s, dtype=torch.bfloat16) * 0.05)(B, S, D)),
        "qw": _w(qw),
        "scales": _w(torch.abs((lambda *s: torch.randn(*s, dtype=torch.bfloat16) * 0.05)(ng, F)) * 0.02 + 0.005),
        "zeros": _w(torch.full((ng, F), qmax / 2.0, dtype=float)),
        "U": _w(U.to(float)),
        "V": _w(V.to(float)),
    }

def reference(x, qw, scales, zeros, U, V):
    B, S, D = x.shape
    ng, F = scales.shape
    G = D // ng
    s = (lambda x, n, axis: torch.repeat_interleave(x, n, dim=axis))(scales, G, axis=0)
    z = (lambda x, n, axis: torch.repeat_interleave(x, n, dim=axis))(zeros, G, axis=0)
    wq = ((lambda x, dt: x.to(dt))(qw, x.dtype) - z) * s
    xr = torch.einsum("bsd,de->bse", x, U)
    h  = torch.einsum("bse,ef->bsf", xr, wq)
    y  = torch.einsum("bsf,fg->bsg", h, V)
    return y
```

```python
import sys

D   = int(sys.argv[1]) if len(sys.argv) > 1 else 8
OUT = sys.argv[2] if len(sys.argv) > 2 else 'standalone__weight_only_int_quip__prompt.s'
RV  = D + 2

XR_OFF = 0
XR_BYTES = 2048 * 640 * 2
T2_OFF = 0x300000
T2_BYTES = 1536 * 640 * 2

L = []
def e(s=''):
    L.append('    ' + s if s and not s.endswith(':') and not s.startswith('.') and not s.startswith(';') else s)

CTS   = 0
CTC   = 8192
AR    = 16384
VRING = 32768
LDS1A = VRING + RV * 12288
R1B = 4; D1B = 2
LDS1B = R1B * 32768
LDS1 = max(LDS1A, LDS1B)
LDS2 = 120 * 1024

hdr = open('standalone__weight_only_int_quip__prompt.s.ref').read().split('\n')
for line in hdr:
    if line.startswith('; @launch'): break
    L.append(line)
L.append(f'; @launch kernel=quip_s1_kernel grid=(240,1,1) block=(512,1,1) lds={LDS1}')
L.append(f'; @launch kernel=standalone__weight_only_int_quip__prompt_kernel grid=(256,1,1) block=(256,1,1) lds={LDS2}')
e('.amdgcn_target "amdgcn-amd-amdhsa--gfx950"')
e('.text')

def srd(d, lo, hi, nbytes, add=0):
    if add:
        e(f's_add_u32 s{d}, s{lo}, {add}')
        e(f's_addc_u32 s{d+1}, s{hi}, 0')
    else:
        e(f's_mov_b32 s{d}, s{lo}')
        e(f's_mov_b32 s{d+1}, s{hi}')
    e(f's_and_b32 s{d+1}, s{d+1}, 0xffff')
    e(f's_mov_b32 s{d+2}, {nbytes}')
    e(f's_mov_b32 s{d+3}, 0x00020000')

e('.globl quip_s1_kernel')
e('.p2align 8')
e('.type quip_s1_kernel,@function')
e('quip_s1_kernel:')
e('s_cmp_ge_u32 s2, 240')
e('s_cbranch_scc1 L1_end')
e('s_load_dwordx16 s[16:31], s[0:1], 0')
e('s_load_dwordx2 s[32:33], s[0:1], 64')
e('v_lshrrev_b32 v1, 6, v0')
e('v_and_b32 v0, 63, v0')
e('v_readfirstlane_b32 s4, v1')
e('s_and_b32 s5, s2, 7')
e('s_lshr_b32 s6, s2, 3')
e('s_cmp_ge_u32 s6, 20')
e('s_cbranch_scc1 L1b')

e('s_mul_i32 s7, s6, 52')
e('s_lshr_b32 s7, s7, 8')
e('s_mul_i32 s8, s7, 5')
e('s_sub_u32 s8, s6, s8')
e('s_and_b32 s9, s5, 1')
e('s_mul_i32 s9, s9, 5')
e('s_add_u32 s8, s8, s9')
e('s_lshr_b32 s9, s5, 1')
e('s_lshl_b32 s9, s9, 2')
e('s_add_u32 s7, s7, s9')
e('s_waitcnt lgkmcnt(0)')
srd(36, 18, 19, 640*1536*4)
srd(40, 26, 27, 1536*1536*2)
srd(44, 32, 33, T2_BYTES, T2_OFF)
srd(48, 20, 21, 3072)
srd(52, 22, 23, 3072)
e('s_lshl_b32 s10, s4, 9')
e('v_lshlrev_b32 v1, 3, v0')
e('v_add_u32 v1, s10, v1')
e('buffer_load_dwordx2 v[2:3], v1, s[48:51], 0 offen')
e('buffer_load_dwordx2 v[4:5], v1, s[52:55], 0 offen')
e('v_lshlrev_b32 v1, 1, v1')
e('s_cmp_ge_u32 s4, 4')
e('s_cbranch_scc1 L1a_prod')

def const_table(vm):
    e(f's_waitcnt vmcnt({vm})')
    e('v_lshlrev_b32 v8, 16, v2')
    e('v_and_b32 v9, 0xffff0000, v2')
    e('v_lshlrev_b32 v10, 16, v3')
    e('v_and_b32 v11, 0xffff0000, v3')
    e('v_lshlrev_b32 v12, 16, v4')
    e('v_and_b32 v13, 0xffff0000, v4')
    e('v_lshlrev_b32 v14, 16, v5')
    e('v_and_b32 v15, 0xffff0000, v5')
    for i in range(4):
        e(f'v_mul_f32 v{12+i}, -v{12+i}, v{8+i}')
    e(f'ds_write_b128 v1, v[8:11] offset:{CTS}')
    e(f'ds_write_b128 v1, v[12:15] offset:{CTC}')

e('s_and_b32 s11, s4, 1')
e('s_lshr_b32 s12, s4, 1')
e('v_and_b32 v16, 15, v0')
e('v_lshrrev_b32 v17, 4, v0')
e('v_lshrrev_b32 v18, 1, v16')
e('v_xor_b32 v18, v17, v18')
e('v_xor_b32 v19, 4, v18')
e('v_lshlrev_b32 v18, 4, v18')
e('v_lshlrev_b32 v19, 4, v19')
e('s_lshl_b32 s13, s11, 12')
e(f's_add_u32 s13, s13, {AR}')
e('v_lshl_add_u32 v20, v16, 7, s13')
e('v_add_u32 v18, v18, v20')
e('v_add_u32 v19, v19, v20')
e('v_lshrrev_b32 v20, 2, v16')
e('v_and_b32 v21, 3, v16')
e('v_lshl_add_u32 v20, v17, 3, v20')
e('v_mul_u32_u24 v20, 192, v20')
e('v_and_b32 v22, 1, v17')
e('v_lshl_add_u32 v20, v22, 5, v20')
e('v_lshl_add_u32 v20, v21, 3, v20')
e('s_mul_i32 s13, s12, 96')
e('v_add_u32 v20, s13, v20')
e('s_mul_i32 s13, s12, 192')
e('v_mul_u32_u24 v22, s13, v22')
e('v_sub_u32 v21, v20, v22')
for i in range(24):
    e(f'v_mov_b32 v{64+i}, 0')
const_table(0)
e('s_mov_b32 s14, 0')
e('s_mov_b32 s15, 0')
e('s_waitcnt lgkmcnt(0)')
e('s_barrier')
e('L1a_cloop:')
for u in range(2):
    e('s_barrier')
    e('v_add_u32 v22, s14, v20')
    e('v_add_u32 v23, s14, v21')
    for k32 in range(2):
        va = 18 + k32
        for et2 in range(2):
            r = 24 + (k32*2+et2)*4
            e(f'ds_read_b128 v[{r}:{r+3}], v{va} offset:{u*8192 + et2*2048}')
        for pp in range(3):
            r = 40 + (k32*3+pp)*4
            vb = 23 if pp == 2 else 22
            for t in range(2):
                e(f'ds_read_b64_tr_b16 v[{r+2*t}:{r+2*t+1}], v{vb} offset:{VRING + k32*6144 + t*768 + pp*32}')
    e('s_add_u32 s14, s14, 12288')
    e(f's_cmp_ge_u32 s14, {RV*12288}')
    e('s_cselect_b32 s14, 0, s14')
    for k32 in range(2):
        for pp in range(3):
            n = (1-k32)*8 + (2-pp)*2
            e(f's_waitcnt lgkmcnt({n})')
            for et2 in range(2):
                a = 24 + (k32*2+et2)*4
                b = 40 + (k32*3+pp)*4
                c = 64 + (et2*3+pp)*4
                e(f'v_mfma_f32_16x16x32_bf16 v[{c}:{c+3}], v[{a}:{a+3}], v[{b}:{b+3}], v[{c}:{c+3}]')
e('s_add_u32 s15, s15, 1')
e('s_cmp_lt_u32 s15, 12')
e('s_cbranch_scc1 L1a_cloop')
e('v_and_b32 v22, 1, v17')
e('v_lshrrev_b32 v23, 1, v17')
e('v_lshlrev_b32 v24, 4, v16')
e('v_lshl_add_u32 v24, v22, 9, v24')
e('v_lshl_add_u32 v24, v23, 3, v24')
e('s_mul_i32 s13, s7, 60')
e('s_lshl_b32 s14, s8, 1')
e('s_add_u32 s13, s13, s14')
e('s_add_u32 s13, s13, s11')
e('s_lshl_b32 s13, s13, 11')
e('s_nop 7')
for pp in range(3):
    e(f's_mul_i32 s14, s12, 3')
    e(f's_add_u32 s14, s14, {pp}')
    e('s_lshr_b32 s15, s14, 1')
    e('s_mul_i32 s15, s15, 40960')
    e('s_and_b32 s14, s14, 1')
    e('s_lshl_b32 s14, s14, 8')
    e('s_add_u32 s14, s14, s15')
    e('s_add_u32 s14, s14, s13')
    for et2 in range(2):
        c = 64 + (et2*3+pp)*4
        r = 26 + (pp*2+et2)*2
        e(f'v_cvt_pk_bf16_f32 v{r}, v{c}, v{c+1}')
        e(f'v_cvt_pk_bf16_f32 v{r+1}, v{c+2}, v{c+3}')
        e(f'buffer_store_dwordx2 v[{r}:{r+1}], v24, s[44:47], s14 offen offset:{et2*1024}')
e('s_endpgm')

e('L1a_prod:')
e('s_sub_u32 s11, s4, 4')
e('v_lshrrev_b32 v16, 4, v0')
e('v_and_b32 v17, 15, v0')
e('s_lshl_b32 s12, s8, 6')
e('s_lshl_b32 s13, s11, 4')
e('s_add_u32 s12, s12, s13')
e('v_add_u32 v18, s12, v16')
e('v_mul_u32_u24 v18, 6144, v18')
e('v_lshl_add_u32 v20, v17, 4, v18')
for j in range(1, 4):
    e(f'v_add_u32 v{20+j}, {j*24576}, v20')
e('s_mul_i32 s12, s11, 192')
e('s_mul_i32 s13, s7, 192')
for i in range(3):
    e(f'v_add_u32 v18, s12, v0')
    if i: e(f'v_add_u32 v18, {64*i}, v18')
    e('v_mul_u32_u24 v19, 5462, v18')
    e('v_lshrrev_b32 v19, 16, v19')
    e('v_mul_u32_u24 v28, 12, v19')
    e('v_sub_u32 v28, v18, v28')
    e('v_lshrrev_b32 v29, 1, v28')
    e('v_and_b32 v28, 1, v28')
    e('v_bfe_u32 v30, v19, 3, 1')
    e('v_sub_u32 v29, v29, v30')
    e('v_cmp_gt_i32 vcc, 0, v29')
    e('v_mov_b32 v30, 5')
    e('s_nop 1')
    e('v_cndmask_b32 v29, v29, v30, vcc')
    e('v_mul_u32_u24 v19, 3072, v19')
    e('v_lshl_add_u32 v19, v29, 5, v19')
    e('v_lshl_add_u32 v19, v28, 4, v19')
    e(f'v_add_u32 v{24+i}, s13, v19')
e('s_lshl_b32 s12, s11, 11')
e(f's_add_u32 s12, s12, {AR}')
e('v_lshrrev_b32 v18, 1, v17')
e('v_lshrrev_b32 v19, 1, v16')
e('v_xor_b32 v18, v18, v19')
e('v_and_b32 v19, 1, v17')
e('v_lshlrev_b32 v19, 3, v19')
e('v_lshl_add_u32 v19, v16, 7, v19')
e('v_add_u32 v19, s12, v19')
for j in range(4):
    e(f'v_xor_b32 v32, {2*j}, v18')
    e(f'v_lshl_add_u32 v{28+j}, v32, 4, v19')
    if j: e(f'v_add_u32 v{28+j}, {j*512}, v{28+j}')
e('v_lshlrev_b32 v27, 4, v17')
e('s_mul_i32 s12, s11, 3072')
e(f's_add_u32 s12, s12, {VRING}')
QB = 64
def issue_loads(cexpr_q, cexpr_v, slot_s, qset):
    for i in range(3):
        if i == 0: e(f's_mov_b32 m0, s{slot_s}')
        else:      e(f's_add_u32 m0, s{slot_s}, {i*1024}')
        e('s_nop 0')
        e(f'buffer_load_dwordx4 v{24+i}, s[40:43], s{cexpr_v} offen lds')
    for j in range(4):
        r = QB + qset*16 + j*4
        e(f'buffer_load_dwordx4 v[{r}:{r+3}], v{20+j}, s[36:39], s{cexpr_q} offen')
e('s_mov_b32 s13, 0')
e('s_mov_b32 s14, 0')
e('s_mov_b32 s15, s12')
e(f's_add_u32 s34, s12, {RV*12288}')
def adv():
    e('s_add_u32 s13, s13, 256')
    e('s_add_u32 s14, s14, 196608')
    e('s_add_u32 s15, s15, 12288')
    e('s_cmp_ge_u32 s15, s34')
    e('s_cselect_b32 s15, s12, s15')
for c in range(D):
    issue_loads(13, 14, 15, c)
    adv()
const_table(7*D)
e('s_waitcnt lgkmcnt(0)')
e('s_barrier')
e('s_mov_b32 s35, 0')
def prod_iter(k, vm, loads):
    e('v_add_u32 v32, s35, v27')
    e(f'ds_read_b128 v[36:39], v32 offset:{CTS}')
    e(f'ds_read_b128 v[40:43], v32 offset:{CTC}')
    e(f's_waitcnt vmcnt({vm})')
    for j in range(4):
        r = QB + k*16 + j*4
        for i in range(4):
            e(f'v_cvt_f32_i32 v{r+i}, v{r+i}')
    e('s_waitcnt lgkmcnt(0)')
    for j in range(4):
        r = QB + k*16 + j*4
        e(f'v_pk_fma_f32 v[{r}:{r+1}], v[{r}:{r+1}], v[36:37], v[40:41]')
        e(f'v_pk_fma_f32 v[{r+2}:{r+3}], v[{r+2}:{r+3}], v[38:39], v[42:43]')
        w = 44 + 2*j
        e(f'v_cvt_pk_bf16_f32 v{w}, v{r}, v{r+1}')
        e(f'v_cvt_pk_bf16_f32 v{w+1}, v{r+2}, v{r+3}')
        e(f'ds_write_b64 v{28+j}, v[{w}:{w+1}] offset:{(k&1)*8192}')
    if loads:
        issue_loads(13, 14, 15, k)
        adv()
    e('s_add_u32 s35, s35, 256')
    e('s_waitcnt lgkmcnt(0)')
    e('s_barrier')
ntrips = 24 // D - 1
if ntrips > 0:
    e('s_mov_b32 s56, 0')
    e('L1a_ploop:')
    for k in range(D):
        prod_iter(k, 7*(D-1), True)
    e('s_add_u32 s56, s56, 1')
    e(f's_cmp_lt_u32 s56, {ntrips}')
    e('s_cbranch_scc1 L1a_ploop')
for k in range(D):
    prod_iter(k, 7*(D-1-k), False)
e('s_endpgm')

e('L1b:')
e('s_sub_u32 s6, s6, 20')
e('s_and_b32 s7, s6, 1')
e('s_lshl_b32 s8, s5, 1')
e('s_add_u32 s7, s7, s8')
e('s_lshr_b32 s8, s6, 1')
e('s_waitcnt lgkmcnt(0)')
srd(36, 16, 17, 2048*640*2)
srd(40, 24, 25, 640*640*2)
srd(44, 32, 33, XR_BYTES, XR_OFF)
e('s_cmp_ge_u32 s4, 4')
e('s_cbranch_scc1 L1b_prod')
e('s_and_b32 s11, s4, 1')
e('s_lshr_b32 s12, s4, 1')
e('v_and_b32 v16, 31, v0')
e('v_lshrrev_b32 v17, 5, v0')
e('v_bfe_u32 v18, v16, 1, 3')
e('v_xor_b32 v18, v17, v18')
e('s_lshl_b32 s13, s11, 13')
e('v_lshl_add_u32 v19, v16, 7, s13')
for k in range(4):
    e(f'v_xor_b32 v24, {2*k}, v18')
    e(f'v_lshl_add_u32 v{20+k}, v24, 4, v19')
e('v_bfe_u32 v18, v0, 2, 2')
e('v_and_b32 v19, 3, v0')
e('v_bfe_u32 v26, v0, 4, 1')
e('v_lshl_add_u32 v27, v17, 3, v18')
e('v_lshlrev_b32 v27, 8, v27')
e('v_lshl_add_u32 v27, v26, 5, v27')
e('v_lshl_add_u32 v27, v19, 3, v27')
e('v_add_u32 v27, 16384, v27')
e('s_lshl_b32 s13, s12, 1')
for et2 in range(2):
    e(f's_add_u32 s14, s13, {et2}')
    e('v_xor_b32 v26, s14, v18')
    e(f'v_lshl_add_u32 v{24+et2}, v26, 6, v27')
for i in range(64):
    e(f'v_mov_b32 v{128+i}, 0')
e('s_mov_b32 s14, 0')
e('s_mov_b32 s15, 0')
e('L1b_cloop:')
e('s_barrier')
for k in range(4):
    e(f'v_add_u32 v{28+k}, s14, v{20+k}')
for et2 in range(2):
    e(f'v_add_u32 v{32+et2}, s14, v{24+et2}')
def rd1b(k):
    b = 64 + k*16
    for mt2 in range(2):
        e(f'ds_read_b128 v[{b+mt2*4}:{b+mt2*4+3}], v{28+k} offset:{mt2*4096}')
    for et2 in range(2):
        for t in range(2):
            r = b + 8 + et2*4 + 2*t
            e(f'ds_read_b64_tr_b16 v[{r}:{r+1}], v{32+et2} offset:{k*4096 + t*1024}')
def mm1b(k):
    b = 64 + k*16
    for et2 in range(2):
        for mt2 in range(2):
            c = 128 + (et2*2+mt2)*16
            e(f'v_mfma_f32_32x32x16_bf16 v[{c}:{c+15}], v[{b+8+et2*4}:{b+8+et2*4+3}], v[{b+mt2*4}:{b+mt2*4+3}], v[{c}:{c+15}]')
rd1b(0); rd1b(1)
e('s_add_u32 s14, s14, 32768')
e(f's_and_b32 s14, s14, {R1B*32768-1}')
e('s_waitcnt lgkmcnt(6)')
mm1b(0)
rd1b(2)
e('s_waitcnt lgkmcnt(6)')
mm1b(1)
rd1b(3)
e('s_waitcnt lgkmcnt(6)')
mm1b(2)
e('s_waitcnt lgkmcnt(0)')
mm1b(3)
e('s_add_u32 s15, s15, 1')
e('s_cmp_lt_u32 s15, 10')
e('s_cbranch_scc1 L1b_cloop')
e('v_lshlrev_b32 v20, 4, v0')
e('s_lshl_b32 s13, s7, 2')
e('s_lshl_b32 s14, s11, 1')
e('s_add_u32 s13, s13, s14')
e('s_mul_i32 s13, s13, 20')
e('s_lshl_b32 s14, s8, 2')
e('s_add_u32 s13, s13, s14')
e('s_lshl_b32 s14, s12, 1')
e('s_add_u32 s13, s13, s14')
e('s_lshl_b32 s13, s13, 11')
e('s_add_u32 s14, s13, 40960')
e('s_nop 7')
for et2 in range(2):
    for mt2 in range(2):
        c = 128 + (et2*2+mt2)*16
        for t in range(2):
            r = 64 + ((et2*2+mt2)*2+t)*4
            for d in range(4):
                e(f'v_cvt_pk_bf16_f32 v{r+d}, v{c+8*t+2*d}, v{c+8*t+2*d+1}')
            e(f'buffer_store_dwordx4 v[{r}:{r+3}], v20, s[44:47], s{13+mt2} offen offset:{et2*2048 + t*1024}')
e('s_endpgm')

e('L1b_prod:')
e('s_sub_u32 s11, s4, 4')
e('v_lshrrev_b32 v16, 3, v0')
e('v_and_b32 v17, 7, v0')
e('v_lshrrev_b32 v18, 4, v0')
e('s_lshl_b32 s12, s7, 7')
e('s_lshl_b32 s13, s11, 5')
e('s_add_u32 s12, s12, s13')
e('v_add_u32 v16, s12, v16')
e('v_mul_u32_u24 v16, 1280, v16')
e('v_xor_b32 v19, v17, v18')
e('v_xor_b32 v18, 4, v19')
e('v_lshl_add_u32 v20, v19, 4, v16')
e('v_lshl_add_u32 v21, v18, 4, v16')
e('v_add_u32 v21, 10240, v21')
e('v_add_u32 v22, 20480, v20')
e('v_add_u32 v23, 20480, v21')
e('v_lshrrev_b32 v16, 4, v0')
e('v_bfe_u32 v17, v0, 2, 2')
e('v_xor_b32 v17, v17, v16')
e('v_and_b32 v18, 3, v0')
e('s_lshl_b32 s12, s11, 4')
e('v_add_u32 v16, s12, v16')
e('v_mul_u32_u24 v16, 1280, v16')
e('v_lshl_add_u32 v16, v17, 6, v16')
e('v_lshl_add_u32 v16, v18, 4, v16')
e('s_lshl_b32 s12, s8, 8')
e('v_add_u32 v24, s12, v16')
for i in range(1, 4):
    e(f'v_add_u32 v{24+i}, {i*5120}, v24')
e('s_lshl_b32 s12, s11, 12')
e('s_mov_b32 s13, 0')
e('s_mov_b32 s14, 0')
e('s_mov_b32 s15, 0')
def issue1b():
    e('s_add_u32 s34, s15, s12')
    for i in range(4):
        e(f's_add_u32 m0, s34, {i*1024}')
        e('s_nop 0')
        e(f'buffer_load_dwordx4 v{20+i}, s[36:39], s13 offen lds')
    for i in range(4):
        e(f's_add_u32 m0, s34, {16384+i*1024}')
        e('s_nop 0')
        e(f'buffer_load_dwordx4 v{24+i}, s[40:43], s14 offen lds')
    e('s_add_u32 s13, s13, 128')
    e('s_add_u32 s14, s14, 81920')
    e('s_add_u32 s15, s15, 32768')
    e(f's_and_b32 s15, s15, {R1B*32768-1}')
for c in range(D1B):
    issue1b()
e('s_mov_b32 s35, 0')
e('L1b_ploop:')
issue1b()
e(f's_waitcnt vmcnt({8*D1B})')
e('s_barrier')
e('s_add_u32 s35, s35, 1')
e(f's_cmp_lt_u32 s35, {10-D1B}')
e('s_cbranch_scc1 L1b_ploop')
for k in range(D1B):
    e(f's_waitcnt vmcnt({8*(D1B-1-k)})')
    e('s_barrier')
e('L1_end:')
e('s_endpgm')

K2 = 'standalone__weight_only_int_quip__prompt_kernel'
e(f'.globl {K2}')
e('.p2align 8')
e(f'.type {K2},@function')
e(f'{K2}:')
e('s_cmp_ge_u32 s2, 256')
e('s_cbranch_scc1 L2_end')
e('s_load_dwordx2 s[28:29], s[0:1], 48')
e('s_load_dwordx2 s[32:33], s[0:1], 64')
e('v_lshrrev_b32 v1, 6, v0')
e('v_and_b32 v0, 63, v0')
e('v_readfirstlane_b32 s4, v1')
e('s_and_b32 s5, s2, 7')
e('s_lshr_b32 s6, s2, 3')
e('s_lshr_b32 s7, s5, 1')
e('s_lshl_b32 s7, s7, 2')
e('s_and_b32 s8, s6, 3')
e('s_add_u32 s7, s7, s8')
e('s_and_b32 s8, s5, 1')
e('s_lshl_b32 s8, s8, 3')
e('s_lshr_b32 s9, s6, 2')
e('s_add_u32 s8, s8, s9')
e('v_lshlrev_b32 v1, 4, v0')
e('s_waitcnt lgkmcnt(0)')
srd(36, 32, 33, XR_BYTES, XR_OFF)
e('s_mul_i32 s9, s8, 122880')
e(f's_add_u32 s9, s9, {T2_OFF}')
e('s_add_u32 s40, s32, s9')
e('s_addc_u32 s41, s33, 0')
e('s_and_b32 s41, s41, 0xffff')
e('s_mov_b32 s42, 122880')
e('s_mov_b32 s43, 0x00020000')
srd(44, 28, 29, 2048*1536*2)
e('s_lshl_b32 s9, s7, 2')
e('s_add_u32 s9, s9, s4')
e('s_mul_i32 s10, s9, 40960')
e('s_lshl_b32 s11, s4, 10')
XB = 16
def issue2(c):
    for gb in range(3):
        e(f's_add_u32 s12, s11, {(gb*40 + 4*c)*1024}')
        e('s_mov_b32 m0, s12')
        e('s_nop 0')
        e('buffer_load_dwordx4 v1, s[40:43], s12 offen lds')
    e(f's_add_u32 s12, s10, {c*4096}')
    for i in range(4):
        r = XB + (4*c+i)*4
        e(f'buffer_load_dwordx4 v[{r}:{r+3}], v1, s[36:39], s12 offen offset:{i*1024}')
for c in range(9):
    issue2(c)
TB = 176
NB = 4
def rd2(s):
    for gb in range(3):
        r = TB + ((s % NB)*3 + gb)*4
        off = (gb*40 + s)*1024
        if off < 65536:
            e(f'ds_read_b128 v[{r}:{r+3}], v1 offset:{off}')
        else:
            e(f'ds_read_b128 v[{r}:{r+3}], v2 offset:{off-65536}')
def mm2(s):
    for gb in range(3):
        r = TB + ((s % NB)*3 + gb)*4
        x = XB + s*4
        cc = '0' if s == 0 else f'a[{gb*16}:{gb*16+15}]'
        e(f'v_mfma_f32_32x32x16_bf16 a[{gb*16}:{gb*16+15}], v[{r}:{r+3}], v[{x}:{x+3}], {cc}')
e('v_add_u32 v2, 0x10000, v1')
PD = 2
def pre_read(s):
    if s % 4 == 0:
        c = s // 4
        e(f's_waitcnt vmcnt({56 if c == 0 else 7*(9-c)})')
        e('s_barrier')
        rd2(s)
        if c == 0: issue2(9)
    else:
        rd2(s)
for s in range(PD):
    pre_read(s)
for s in range(40):
    if s + PD < 40:
        pre_read(s + PD)
        e(f's_waitcnt lgkmcnt({3*PD})')
    else:
        e(f's_waitcnt lgkmcnt({3*(39-s)})')
    mm2(s)
e('v_and_b32 v3, 31, v0')
e('v_lshrrev_b32 v4, 5, v0')
e('s_lshl_b32 s9, s9, 5')
e('v_add_u32 v3, s9, v3')
e('v_mul_u32_u24 v3, 3072, v3')
e('v_lshl_add_u32 v3, v4, 4, v3')
e('s_mul_i32 s12, s8, 192')
e('s_nop 7')
e('s_nop 3')
for gb in range(3):
    r = 16 + gb*24
    for i in range(16):
        e(f'v_accvgpr_read_b32 v{r+i}, a{gb*16+i}')
    w = r + 16
    for d in range(8):
        e(f'v_cvt_pk_bf16_f32 v{w+d}, v{r+2*d}, v{r+2*d+1}')
    e('s_nop 1')
    for jp in range(2):
        e(f'v_permlane32_swap_b32 v{w+4*jp}, v{w+4*jp+2}')
        e(f'v_permlane32_swap_b32 v{w+4*jp+1}, v{w+4*jp+3}')
    for jp in range(2):
        e(f'buffer_store_dwordx4 v[{w+4*jp}:{w+4*jp+3}], v3, s[44:47], s12 offen offset:{gb*64 + jp*32}')
e('L2_end:')
e('s_endpgm')

def kd(name, nvgpr, accum):
    e('.section .rodata,"a"')
    e('.p2align 6')
    e(f'.amdhsa_kernel {name}')
    L.append(f'  .amdhsa_next_free_vgpr {nvgpr}')
    L.append('  .amdhsa_next_free_sgpr 64')
    L.append(f'  .amdhsa_accum_offset {accum}')
    L.append('  .amdhsa_group_segment_fixed_size 0')
    L.append('  .amdhsa_kernarg_size 72')
    L.append('  .amdhsa_user_sgpr_count 2')
    L.append('  .amdhsa_user_sgpr_kernarg_segment_ptr 1')
    L.append('  .amdhsa_system_sgpr_workgroup_id_x 1')
    e('.end_amdhsa_kernel')
kd('quip_s1_kernel', max(192, 64+16*D), max(192, 64+16*D))
kd(K2, 224+48, 224)
open(OUT, 'w').write('\n'.join(L) + '\n')
print('wrote', OUT, len(L), 'lines; LDS1', LDS1)
```

```python
import sys, os
def opt(name, d): return int(os.environ.get(name, str(d)))
D    = opt('D', 4)
STAG = opt('STAG', 0)
SA = opt('SA', 5)
SB = opt('SB', 6)
P2   = opt('P2', 4)
PROF = opt('PROF', 0)
NOPK = opt('NOPK', 0)
DG = opt('DG', 0)
OUT  = sys.argv[1] if len(sys.argv) > 1 else 'standalone__weight_only_int_quip__prompt.s'
RV   = D + 2
PV   = 250

XR_OFF = 0
XR_BYTES = 2048 * 640 * 2
T2_OFF = 0x300000
T2_BYTES = 1536 * 640 * 2

L = []
def e(s=''):
    L.append('    ' + s if s and not s.endswith(':') and not s.startswith('.') and not s.startswith(';') else s)

CTS   = 0
CTC   = 8192
AR    = 16384
VRING = 32768
LDS1A = VRING + RV * 12288
R1B = 4; D1B = 2
LDS1B = R1B * 32768
LDS1 = max(LDS1A, LDS1B)
LDS2 = 120 * 1024

hdr = open('standalone__weight_only_int_quip__prompt.s.ref').read().split('\n')
for line in hdr:
    if line.startswith('; @launch'): break
    L.append(line)
L.append(f'; @launch kernel=quip_s1_kernel grid=(240,1,1) block=(512,1,1) lds={LDS1}')
L.append(f'; @launch kernel=standalone__weight_only_int_quip__prompt_kernel grid=(256,1,1) block=(256,1,1) lds={LDS2}')
e('.amdgcn_target "amdgcn-amd-amdhsa--gfx950"')
e('.text')

def stamp(idx):
    if not PROF: return
    e('s_memtime s[58:59]')
    if isinstance(idx, str):
        e(f's_mov_b32 m0, {idx}')
        e('s_waitcnt lgkmcnt(0)')
        e(f'v_writelane_b32 v{PV}, s58, m0')
        e(f's_add_u32 {idx}, {idx}, 1')
    else:
        e('s_waitcnt lgkmcnt(0)')
        e(f'v_writelane_b32 v{PV}, s58, {idx}')
def stamp_rt(idx):
    if not PROF: return
    e('s_memrealtime s[58:59]')
    e('s_waitcnt lgkmcnt(0)')
    e(f'v_writelane_b32 v{PV}, s58, {idx}')
def stamp_flush(kern):
    if not PROF: return
    stamp(62); stamp_rt(63)
    e(f's_add_u32 s60, s32, {0x800000 + kern*0x100000}')
    e('s_addc_u32 s61, s33, 0')
    e('s_and_b32 s61, s61, 0xffff')
    e('s_mov_b32 s62, 0x100000')
    e('s_mov_b32 s63, 0x00020000')
    e('s_lshl_b32 s58, s2, 11')
    e('s_lshl_b32 s59, s4, 8')
    e('s_add_u32 s58, s58, s59')
    e(f'v_lshlrev_b32 v{PV+1}, 2, v0')
    e(f'buffer_store_dword v{PV}, v{PV+1}, s[60:63], s58 offen')

def srd(d, lo, hi, nbytes, add=0):
    if add:
        e(f's_add_u32 s{d}, s{lo}, {add}')
        e(f's_addc_u32 s{d+1}, s{hi}, 0')
        e(f's_and_b32 s{d+1}, s{d+1}, 0xffff')
    else:
        e(f's_mov_b32 s{d}, s{lo}')
        e(f's_and_b32 s{d+1}, s{hi}, 0xffff')
    e(f's_mov_b32 s{d+2}, {nbytes}')
    e(f's_mov_b32 s{d+3}, 0x00020000')

e('.globl quip_s1_kernel')
e('.p2align 8')
e('.type quip_s1_kernel,@function')
e('quip_s1_kernel:')
e('s_cmp_ge_u32 s2, 240')
e('s_cbranch_scc1 L1_end')
e('s_load_dwordx16 s[16:31], s[0:1], 0')
e('s_load_dwordx2 s[32:33], s[0:1], 64')
e('v_lshrrev_b32 v1, 6, v0')
e('v_and_b32 v0, 63, v0')
e('v_readfirstlane_b32 s4, v1')
e('s_and_b32 s5, s2, 7')
e('s_lshr_b32 s6, s2, 3')
if PROF:
    e('s_memtime s[56:57]')
    e('s_memrealtime s[54:55]')
e('s_cmp_ge_u32 s6, 20')
e('s_cbranch_scc1 L1b')
def prof_start():
    if not PROF: return
    e(f'v_writelane_b32 v{PV}, s56, 0')
    e(f'v_writelane_b32 v{PV}, s54, 61')
    e('s_mov_b32 s57, 2')

e('s_mul_i32 s7, s6, 52')
e('s_lshr_b32 s7, s7, 8')
e('s_mul_i32 s8, s7, 5')
e('s_sub_u32 s8, s6, s8')
if STAG:
    e(f's_mul_i32 s35, s8, {SA}')
    e(f's_mul_i32 s9, s7, {SB}')
    e('s_add_u32 s35, s35, s9')
e('s_and_b32 s9, s5, 1')
e('s_mul_i32 s9, s9, 5')
e('s_add_u32 s8, s8, s9')
e('s_lshr_b32 s9, s5, 1')
e('s_lshl_b32 s9, s9, 2')
e('s_add_u32 s7, s7, s9')
e('s_cmp_lt_u32 s4, 4')
e('s_cbranch_scc1 L1a_cons')

e('s_sub_u32 s11, s4, 4')
e('v_lshrrev_b32 v16, 4, v0')
e('v_and_b32 v17, 15, v0')
e('s_mul_i32 s12, s11, 192')
e('s_mul_i32 s13, s7, 192')
e('v_mov_b32 v31, 5')
for i in range(3):
    e(f'v_add_u32 v18, s12, v0')
    if i: e(f'v_add_u32 v18, {64*i}, v18')
    e('v_mul_u32_u24 v19, 5462, v18')
    e('v_lshrrev_b32 v19, 16, v19')
    e('v_mul_u32_u24 v28, 12, v19')
    e('v_sub_u32 v28, v18, v28')
    e('v_lshrrev_b32 v29, 1, v28')
    e('v_bfe_u32 v30, v19, 3, 1')
    e('v_sub_u32 v29, v29, v30')
    e('v_cmp_gt_i32 vcc, 0, v29')
    e('v_and_b32 v28, 1, v28')
    e('v_mul_u32_u24 v19, 3072, v19')
    e('v_cndmask_b32 v29, v29, v31, vcc')
    e('v_lshl_add_u32 v19, v28, 4, v19')
    e('v_lshl_add_u32 v19, v29, 5, v19')
    e(f'v_add_u32 v{24+i}, s13, v19')
e('s_lshl_b32 s12, s8, 6')
e('s_lshl_b32 s13, s11, 4')
e('s_add_u32 s12, s12, s13')
e('v_add_u32 v18, s12, v16')
e('v_mul_u32_u24 v18, 6144, v18')
e('v_lshl_add_u32 v20, v17, 4, v18')
for j in range(1, 4):
    e(f'v_add_u32 v{20+j}, {j*24576}, v20')
if STAG:
    e('s_mul_i32 s13, s35, 2731')
    e('s_lshr_b32 s13, s13, 16')
    e('s_mul_i32 s13, s13, 24')
    e('s_sub_u32 s35, s35, s13')
    e('s_lshl_b32 s13, s35, 8')
    e('s_mul_i32 s14, s35, 196608')
    e('s_mov_b32 s35, s13')
else:
    e('s_mov_b32 s13, 0')
    e('s_mov_b32 s14, 0')
    e('s_mov_b32 s35, 0')
e('s_mul_i32 s12, s11, 3072')
e(f's_add_u32 s12, s12, {VRING}')
e('s_mov_b32 s15, s12')
e(f's_add_u32 s34, s12, {RV*12288}')
e('s_waitcnt lgkmcnt(0)')
prof_start()
srd(40, 26, 27, 1536*1536*2)
srd(36, 18, 19, 640*1536*4)
QB = 64
def issue_loads(qset):
    for i in range(0 if DG&8 else 3):
        if i == 0: e('s_mov_b32 m0, s15')
        else:      e(f's_add_u32 m0, s15, {i*1024}')
        e('s_nop 0')
        e(f'buffer_load_dwordx4 v{24+i}, s[40:43], s14 offen lds')
    for j in range(0 if DG&8 else 4):
        r = QB + qset*16 + j*4
        e(f'buffer_load_dwordx4 v[{r}:{r+3}], v{20+j}, s[36:39], s13 offen')
    e('s_add_u32 s13, s13, 256')
    e('s_add_u32 s14, s14, 196608')
    if STAG:
        e('s_cmp_ge_u32 s13, 6144')
        e('s_cselect_b32 s13, 0, s13')
        e('s_cselect_b32 s14, 0, s14')
    e('s_add_u32 s15, s15, 12288')
    e('s_cmp_ge_u32 s15, s34')
    e('s_cselect_b32 s15, s12, s15')
stamp(1)
issue_loads(0)
e('s_lshl_b32 s9, s11, 11')
e(f's_add_u32 s9, s9, {AR}')
e('v_lshrrev_b32 v18, 1, v17')
e('v_lshrrev_b32 v19, 1, v16')
e('v_xor_b32 v18, v18, v19')
e('v_and_b32 v19, 1, v17')
e('v_lshlrev_b32 v19, 3, v19')
e('v_lshl_add_u32 v19, v16, 7, v19')
e('v_add_u32 v19, s9, v19')
for j in range(4):
    e(f'v_xor_b32 v32, {2*j}, v18')
    e(f'v_lshl_add_u32 v{28+j}, v32, 4, v19')
    if j: e(f'v_add_u32 v{28+j}, {j*512}, v{28+j}')
e('v_lshlrev_b32 v27, 4, v17')
for c in range(1, D):
    issue_loads(c)
def const_read():
    e('v_add_u32 v32, s35, v27')
    e(f'ds_read_b128 v[36:39], v32 offset:{CTS}')
    e(f'ds_read_b128 v[40:43], v32 offset:{CTC}')
    e('s_add_u32 s35, s35, 256')
    if STAG:
        e('s_cmp_ge_u32 s35, 6144')
        e('s_cselect_b32 s35, 0, s35')
e('s_barrier')
const_read()
def prod_iter(k, vm, loads, last=False):
    e(f's_waitcnt vmcnt({vm})')
    stamp('s57')
    for j in range(0 if DG&4 else 4):
        r = QB + k*16 + j*4
        for i in range(4):
            e(f'v_cvt_f32_i32 v{r+i}, v{r+i}')
    e('s_waitcnt lgkmcnt(0)')
    for j in range(0 if DG&4 else 4):
        r = QB + k*16 + j*4
        if NOPK:
            for i in range(4):
                e(f'v_fma_f32 v{r+i}, v{r+i}, v{36+i}, v{40+i}')
        else:
            e(f'v_pk_fma_f32 v[{r}:{r+1}], v[{r}:{r+1}], v[36:37], v[40:41]')
            e(f'v_pk_fma_f32 v[{r+2}:{r+3}], v[{r+2}:{r+3}], v[38:39], v[42:43]')
        w = 44 + 2*j
        e(f'v_cvt_pk_bf16_f32 v{w}, v{r}, v{r+1}')
        e(f'v_cvt_pk_bf16_f32 v{w+1}, v{r+2}, v{r+3}')
        e(f'ds_write_b64 v{28+j}, v[{w}:{w+1}] offset:{(k&1)*8192}')
    if not last:
        const_read()
    if loads:
        issue_loads(k)
    e(f's_waitcnt lgkmcnt({0 if last else 2})')
    e('s_barrier')
ntrips = 24 // D - 1
if ntrips > 0:
    e('s_mov_b32 s10, 0')
    e('L1a_ploop:')
    for k in range(D):
        prod_iter(k, 7*(D-1), True)
    e('s_add_u32 s10, s10, 1')
    e(f's_cmp_lt_u32 s10, {ntrips}')
    e('s_cbranch_scc1 L1a_ploop')
for k in range(D):
    prod_iter(k, 7*(D-1-k), False, last=(k == D-1))
stamp_flush(0)
e('s_endpgm')

e('L1a_cons:')
e('s_and_b32 s11, s4, 1')
e('s_lshr_b32 s12, s4, 1')
e('s_lshl_b32 s10, s4, 9')
e('v_lshlrev_b32 v1, 3, v0')
e('v_add_u32 v1, s10, v1')
e('v_and_b32 v16, 15, v0')
e('v_lshrrev_b32 v17, 4, v0')
e('v_lshrrev_b32 v18, 1, v16')
e('v_xor_b32 v18, v17, v18')
e('v_xor_b32 v19, 4, v18')
e('v_lshlrev_b32 v18, 4, v18')
e('v_lshlrev_b32 v19, 4, v19')
e('s_lshl_b32 s13, s11, 12')
e(f's_add_u32 s13, s13, {AR}')
e('v_lshl_add_u32 v20, v16, 7, s13')
e('v_add_u32 v18, v18, v20')
e('v_add_u32 v19, v19, v20')
e('s_waitcnt lgkmcnt(0)')
prof_start()
srd(48, 20, 21, 3072)
srd(52, 22, 23, 3072)
e('buffer_load_dwordx2 v[2:3], v1, s[48:51], 0 offen')
e('buffer_load_dwordx2 v[4:5], v1, s[52:55], 0 offen')
e('buffer_load_dwordx2 v[6:7], v1, s[48:51], 0 offen offset:2048')
e('buffer_load_dwordx2 v[8:9], v1, s[52:55], 0 offen offset:2048')
srd(44, 32, 33, T2_BYTES, T2_OFF)
e('v_lshlrev_b32 v1, 1, v1')
e('v_lshrrev_b32 v20, 2, v16')
e('v_and_b32 v21, 3, v16')
e('v_lshl_add_u32 v20, v17, 3, v20')
e('v_mul_u32_u24 v20, 192, v20')
e('v_and_b32 v22, 1, v17')
e('v_lshl_add_u32 v20, v22, 5, v20')
e('v_lshl_add_u32 v20, v21, 3, v20')
e('s_mul_i32 s13, s12, 96')
e('v_add_u32 v20, s13, v20')
e('s_mul_i32 s13, s12, 192')
e('v_mul_u32_u24 v22, s13, v22')
e('v_sub_u32 v21, v20, v22')
ACC = 24; FS = 48
for i in range(24):
    e(f'v_mov_b32 v{ACC+i}, 0')
for i in range(40):
    e(f'v_mov_b32 v{FS+40+i}, 0')
for half in range(2):
    s0 = 2 + 4*half; z0 = 4 + 4*half
    e(f's_waitcnt vmcnt({2-2*half})')
    e(f'v_lshlrev_b32 v8, 16, v{s0}' if False else f'v_lshlrev_b32 v128, 16, v{s0}')
    e(f'v_and_b32 v129, 0xffff0000, v{s0}')
    e(f'v_lshlrev_b32 v130, 16, v{s0+1}')
    e(f'v_and_b32 v131, 0xffff0000, v{s0+1}')
    e(f'v_lshlrev_b32 v132, 16, v{z0}')
    e(f'v_and_b32 v133, 0xffff0000, v{z0}')
    e(f'v_lshlrev_b32 v134, 16, v{z0+1}')
    e(f'v_and_b32 v135, 0xffff0000, v{z0+1}')
    for i in range(4):
        e(f'v_mul_f32 v{132+i}, -v{132+i}, v{128+i}')
    e(f'ds_write_b128 v1, v[128:131] offset:{CTS + half*4096}')
    e(f'ds_write_b128 v1, v[132:135] offset:{CTC + half*4096}')
    if half == 0: e('s_nop 1')
e('s_mov_b32 s14, 0')
e('s_mov_b32 s15, 0')
e('s_waitcnt lgkmcnt(0)')
e('s_barrier')
stamp(1)
def c1a_reads(u):
    out = []
    base = FS + 40*u
    for k32 in range(2):
        va = 18 + k32
        for et2 in range(2):
            r = base + (k32*2+et2)*4
            out.append(f'ds_read_b128 v[{r}:{r+3}], v{va} offset:{u*8192 + et2*2048}')
        for pp in range(3):
            r = base + 16 + (k32*3+pp)*4
            vb = 23 if pp == 2 else 22
            for t in range(2):
                out.append(f'ds_read_b64_tr_b16 v[{r+2*t}:{r+2*t+1}], v{vb} offset:{VRING + k32*6144 + t*768 + pp*32}')
    return out
def c1a_mfmas(u):
    out = []
    base = FS + 40*u
    for k32 in range(2):
        for pp in range(3):
            for et2 in range(2):
                a = base + (k32*2+et2)*4
                b = base + 16 + (k32*3+pp)*4
                c = ACC + (et2*3+pp)*4
                out.append(f'v_mfma_f32_16x16x32_bf16 v[{c}:{c+3}], v[{a}:{a+3}], v[{b}:{b+3}], v[{c}:{c+3}]')
    return out
def interleave(rd, mm, per):
    i = 0
    for m in mm:
        for _ in range(per):
            if i < len(rd): e(rd[i]); i += 1
        e(m)
    while i < len(rd): e(rd[i]); i += 1
e('L1a_cloop:')
for u in range(2):
    e('s_barrier')
    stamp('s57')
    e('v_add_u32 v22, s14, v20')
    e('v_add_u32 v23, s14, v21')
    e('s_add_u32 s14, s14, 12288')
    e(f's_cmp_ge_u32 s14, {RV*12288}')
    e('s_cselect_b32 s14, 0, s14')
    interleave([] if DG&2 else c1a_reads(u), [] if DG&1 else c1a_mfmas(1-u), 2)
    e('s_waitcnt lgkmcnt(0)')
e('s_add_u32 s15, s15, 1')
e('s_cmp_lt_u32 s15, 12')
e('s_cbranch_scc1 L1a_cloop')
for m in c1a_mfmas(1): e(m)
e('v_and_b32 v22, 1, v17')
e('v_lshrrev_b32 v23, 1, v17')
e('v_lshlrev_b32 v1, 4, v16')
e('v_lshl_add_u32 v1, v22, 9, v1')
e('v_lshl_add_u32 v1, v23, 3, v1')
e('s_mul_i32 s13, s7, 60')
e('s_lshl_b32 s14, s8, 1')
e('s_add_u32 s13, s13, s14')
e('s_add_u32 s13, s13, s11')
e('s_lshl_b32 s13, s13, 11')
for pp in range(3):
    e(f's_mul_i32 s14, s12, 3')
    e(f's_add_u32 s14, s14, {pp}')
    e('s_lshr_b32 s15, s14, 1')
    e('s_mul_i32 s15, s15, 40960')
    e('s_and_b32 s14, s14, 1')
    e('s_lshl_b32 s14, s14, 8')
    e('s_add_u32 s14, s14, s15')
    e('s_add_u32 s14, s14, s13')
    if pp == 0: e('s_nop 3')
    for et2 in range(2):
        c = ACC + (et2*3+pp)*4
        r = FS + (pp*2+et2)*2
        e(f'v_cvt_pk_bf16_f32 v{r}, v{c}, v{c+1}')
        e(f'v_cvt_pk_bf16_f32 v{r+1}, v{c+2}, v{c+3}')
        e(f'buffer_store_dwordx2 v[{r}:{r+1}], v1, s[44:47], s14 offen offset:{et2*1024}')
stamp_flush(0)
e('s_endpgm')

e('L1b:')
if DG&16: e('s_endpgm')
e('s_sub_u32 s6, s6, 20')
e('s_and_b32 s7, s6, 1')
e('s_lshl_b32 s8, s5, 1')
e('s_add_u32 s7, s7, s8')
e('s_lshr_b32 s8, s6, 1')
e('s_cmp_lt_u32 s4, 4')
e('s_cbranch_scc1 L1b_cons')
e('s_sub_u32 s11, s4, 4')
e('v_lshrrev_b32 v16, 3, v0')
e('v_and_b32 v17, 7, v0')
e('v_lshrrev_b32 v18, 4, v0')
e('s_lshl_b32 s12, s7, 7')
e('s_lshl_b32 s13, s11, 5')
e('s_add_u32 s12, s12, s13')
e('v_add_u32 v16, s12, v16')
e('v_mul_u32_u24 v16, 1280, v16')
e('v_xor_b32 v19, v17, v18')
e('v_xor_b32 v18, 4, v19')
e('v_lshl_add_u32 v20, v19, 4, v16')
e('v_lshl_add_u32 v21, v18, 4, v16')
e('v_add_u32 v21, 10240, v21')
e('v_add_u32 v22, 20480, v20')
e('v_add_u32 v23, 20480, v21')
e('v_lshrrev_b32 v16, 4, v0')
e('v_bfe_u32 v17, v0, 2, 2')
e('v_xor_b32 v17, v17, v16')
e('v_and_b32 v18, 3, v0')
e('s_lshl_b32 s12, s11, 4')
e('v_add_u32 v16, s12, v16')
e('v_mul_u32_u24 v16, 1280, v16')
e('v_lshl_add_u32 v16, v17, 6, v16')
e('v_lshl_add_u32 v16, v18, 4, v16')
e('s_lshl_b32 s12, s8, 8')
e('v_add_u32 v24, s12, v16')
for i in range(1, 4):
    e(f'v_add_u32 v{24+i}, {i*5120}, v24')
e('s_lshl_b32 s12, s11, 12')
e('s_mov_b32 s13, 0')
e('s_mov_b32 s14, 0')
e('s_mov_b32 s15, 0')
e('s_waitcnt lgkmcnt(0)')
prof_start()
srd(36, 16, 17, 2048*640*2)
srd(40, 24, 25, 640*640*2)
def issue1b():
    e('s_add_u32 s34, s15, s12')
    for i in range(4):
        e(f's_add_u32 m0, s34, {i*1024}')
        e('s_nop 0')
        e(f'buffer_load_dwordx4 v{20+i}, s[36:39], s13 offen lds')
    for i in range(4):
        e(f's_add_u32 m0, s34, {16384+i*1024}')
        e('s_nop 0')
        e(f'buffer_load_dwordx4 v{24+i}, s[40:43], s14 offen lds')
    e('s_add_u32 s13, s13, 128')
    e('s_add_u32 s14, s14, 81920')
    e('s_add_u32 s15, s15, 32768')
    e(f's_and_b32 s15, s15, {R1B*32768-1}')
stamp(1)
for c in range(D1B):
    issue1b()
e('s_mov_b32 s35, 0')
e('L1b_ploop:')
issue1b()
e(f's_waitcnt vmcnt({8*D1B})')
stamp('s57')
e('s_barrier')
e('s_add_u32 s35, s35, 1')
e(f's_cmp_lt_u32 s35, {10-D1B}')
e('s_cbranch_scc1 L1b_ploop')
for k in range(D1B):
    e(f's_waitcnt vmcnt({8*(D1B-1-k)})')
    e('s_barrier')
stamp_flush(0)
e('s_endpgm')

e('L1b_cons:')
e('s_and_b32 s11, s4, 1')
e('s_lshr_b32 s12, s4, 1')
e('v_and_b32 v16, 31, v0')
e('v_lshrrev_b32 v17, 5, v0')
e('v_bfe_u32 v18, v16, 1, 3')
e('v_xor_b32 v18, v17, v18')
e('s_lshl_b32 s13, s11, 13')
e('v_lshl_add_u32 v19, v16, 7, s13')
for k in range(4):
    e(f'v_xor_b32 v14, {2*k}, v18')
    e(f'v_lshl_add_u32 v{2+k}, v14, 4, v19')
e('v_bfe_u32 v18, v0, 2, 2')
e('v_and_b32 v19, 3, v0')
e('v_bfe_u32 v14, v0, 4, 1')
e('v_lshl_add_u32 v15, v17, 3, v18')
e('v_lshlrev_b32 v15, 8, v15')
e('v_lshl_add_u32 v15, v14, 5, v15')
e('v_lshl_add_u32 v15, v19, 3, v15')
e('v_add_u32 v15, 16384, v15')
e('s_lshl_b32 s13, s12, 1')
for et2 in range(2):
    e(f's_add_u32 s14, s13, {et2}')
    e('v_xor_b32 v14, s14, v18')
    e(f'v_lshl_add_u32 v{6+et2}, v14, 6, v15')
ACB = 16; FB = 80
for i in range(64):
    e(f'v_mov_b32 v{ACB+i}, 0')
for i in range(64):
    e(f'v_mov_b32 v{FB+64+i}, 0')
e('s_waitcnt lgkmcnt(0)')
prof_start()
srd(44, 32, 33, XR_BYTES, XR_OFF)
e('s_mov_b32 s14, 0')
e('s_mov_b32 s15, 0')
def c1b_reads(u):
    out = []
    for k in range(4):
        b = FB + 64*u + k*16
        for mt2 in range(2):
            out.append(f'ds_read_b128 v[{b+mt2*4}:{b+mt2*4+3}], v{8+k} offset:{mt2*4096}')
        for et2 in range(2):
            for t in range(2):
                r = b + 8 + et2*4 + 2*t
                out.append(f'ds_read_b64_tr_b16 v[{r}:{r+1}], v{12+et2} offset:{k*4096 + t*1024}')
    return out
def c1b_mfmas(u):
    out = []
    for k in range(4):
        b = FB + 64*u + k*16
        for et2 in range(2):
            for mt2 in range(2):
                c = ACB + (et2*2+mt2)*16
                out.append(f'v_mfma_f32_32x32x16_bf16 v[{c}:{c+15}], v[{b+8+et2*4}:{b+8+et2*4+3}], v[{b+mt2*4}:{b+mt2*4+3}], v[{c}:{c+15}]')
    return out
e('L1b_cloop:')
for u in range(2):
    e('s_barrier')
    stamp('s57')
    for k in range(4):
        e(f'v_add_u32 v{8+k}, s14, v{2+k}')
    for et2 in range(2):
        e(f'v_add_u32 v{12+et2}, s14, v{6+et2}')
    e('s_add_u32 s14, s14, 32768')
    e(f's_and_b32 s14, s14, {R1B*32768-1}')
    interleave(c1b_reads(u), c1b_mfmas(1-u), 2)
    e('s_waitcnt lgkmcnt(0)')
e('s_add_u32 s15, s15, 1')
e('s_cmp_lt_u32 s15, 5')
e('s_cbranch_scc1 L1b_cloop')
for m in c1b_mfmas(1): e(m)
e('v_lshlrev_b32 v1, 4, v0')
e('s_lshl_b32 s13, s7, 2')
e('s_lshl_b32 s14, s11, 1')
e('s_add_u32 s13, s13, s14')
e('s_mul_i32 s13, s13, 20')
e('s_lshl_b32 s14, s8, 2')
e('s_add_u32 s13, s13, s14')
e('s_lshl_b32 s14, s12, 1')
e('s_add_u32 s13, s13, s14')
e('s_lshl_b32 s13, s13, 11')
e('s_add_u32 s14, s13, 40960')
e('s_nop 3')
for et2 in range(2):
    for mt2 in range(2):
        c = ACB + (et2*2+mt2)*16
        for t in range(2):
            r = FB + ((et2*2+mt2)*2+t)*4
            for d in range(4):
                e(f'v_cvt_pk_bf16_f32 v{r+d}, v{c+8*t+2*d}, v{c+8*t+2*d+1}')
            e(f'buffer_store_dwordx4 v[{r}:{r+3}], v1, s[44:47], s{13+mt2} offen offset:{et2*2048 + t*1024}')
stamp_flush(0)
e('L1_end:')
e('s_endpgm')

PV = 224
K2 = 'standalone__weight_only_int_quip__prompt_kernel'
e(f'.globl {K2}')
e('.p2align 8')
e(f'.type {K2},@function')
e(f'{K2}:')
e('s_cmp_ge_u32 s2, 256')
e('s_cbranch_scc1 L2_end')
e('s_load_dwordx2 s[32:33], s[0:1], 64')
e('s_load_dwordx2 s[28:29], s[0:1], 48')
e('v_lshrrev_b32 v1, 6, v0')
e('v_and_b32 v0, 63, v0')
e('v_readfirstlane_b32 s4, v1')
if PROF:
    e('s_memtime s[56:57]')
    e('s_memrealtime s[54:55]')
e('s_and_b32 s5, s2, 7')
e('s_lshr_b32 s6, s2, 3')
e('s_lshr_b32 s7, s5, 1')
e('s_lshl_b32 s7, s7, 2')
e('s_and_b32 s8, s6, 3')
e('s_add_u32 s7, s7, s8')
e('s_and_b32 s8, s5, 1')
e('s_lshl_b32 s8, s8, 3')
e('s_lshr_b32 s9, s6, 2')
e('s_add_u32 s8, s8, s9')
e('v_lshlrev_b32 v1, 4, v0')
e('v_add_u32 v2, 0x10000, v1')
e('s_mul_i32 s13, s8, 122880')
e(f's_add_u32 s13, s13, {T2_OFF}')
e('s_lshl_b32 s9, s7, 2')
e('s_add_u32 s9, s9, s4')
e('s_mul_i32 s10, s9, 40960')
e('s_lshl_b32 s11, s4, 10')
e('s_mov_b32 s42, 122880')
e('s_mov_b32 s43, 0x00020000')
e('s_waitcnt lgkmcnt(0)')
prof_start()
e('s_add_u32 s40, s32, s13')
e('s_addc_u32 s41, s33, 0')
e('s_and_b32 s41, s41, 0xffff')
srd(36, 32, 33, XR_BYTES, XR_OFF)
XB = 16
def issue2_list(c):
    out = []
    for gb in range(3):
        out.append([f's_add_u32 s12, s11, {(gb*40 + 4*c)*1024}', 's_mov_b32 m0, s12', 's_nop 0',
                    'buffer_load_dwordx4 v1, s[40:43], s12 offen lds'])
    for i in range(4):
        r = XB + (4*c+i)*4
        pre = [f's_add_u32 s14, s10, {c*4096}'] if i == 0 else []
        out.append(pre + [f'buffer_load_dwordx4 v[{r}:{r+3}], v1, s[36:39], s14 offen offset:{i*1024}'])
    return out
stamp(1)
for c in range(P2):
    for grp in issue2_list(c):
        for x in grp: e(x)
srd(44, 28, 29, 2048*1536*2)
stamp(13)
TB = 176
NB = 4
def rd2(s):
    for gb in range(3):
        r = TB + ((s % NB)*3 + gb)*4
        off = (gb*40 + s)*1024
        if off < 65536:
            e(f'ds_read_b128 v[{r}:{r+3}], v1 offset:{off}')
        else:
            e(f'ds_read_b128 v[{r}:{r+3}], v2 offset:{off-65536}')
PD = 2
issued = P2
pending = []
def pre_read(s):
    global issued, pending
    if s % 4 == 0:
        c = s // 4
        for grp in pending:
            for x in grp: e(x)
        pending = []
        e(f's_waitcnt vmcnt({7*(issued-c-1)})')
        e('s_barrier')
        stamp(2+c)
        rd2(s)
        if issued < 10:
            pending = issue2_list(issued)
            issued += 1
    else:
        rd2(s)
for s in range(PD):
    pre_read(s)
for s in range(40):
    if s + PD < 40:
        pre_read(s + PD)
        e(f's_waitcnt lgkmcnt({3*PD})')
    else:
        e(f's_waitcnt lgkmcnt({3*(39-s)})')
    for gb in range(3):
        r = TB + ((s % NB)*3 + gb)*4
        x = XB + s*4
        cc = '0' if s == 0 else f'a[{gb*16}:{gb*16+15}]'
        e(f'v_mfma_f32_32x32x16_bf16 a[{gb*16}:{gb*16+15}], v[{r}:{r+3}], v[{x}:{x+3}], {cc}')
        if pending:
            for x_ in pending.pop(0): e(x_)
stamp(14)
e('v_and_b32 v3, 31, v0')
e('v_lshrrev_b32 v4, 5, v0')
e('s_lshl_b32 s9, s9, 5')
e('v_add_u32 v3, s9, v3')
e('v_mul_u32_u24 v3, 3072, v3')
e('v_lshl_add_u32 v3, v4, 4, v3')
e('s_mul_i32 s12, s8, 192')
e('s_nop 7')
for gb in range(3):
    r = 16 + gb*24
    for i in range(16):
        e(f'v_accvgpr_read_b32 v{r+i}, a{gb*16+i}')
    w = r + 16
    for d in range(8):
        e(f'v_cvt_pk_bf16_f32 v{w+d}, v{r+2*d}, v{r+2*d+1}')
    e('s_nop 1')
    for jp in range(2):
        e(f'v_permlane32_swap_b32 v{w+4*jp}, v{w+4*jp+2}')
        e(f'v_permlane32_swap_b32 v{w+4*jp+1}, v{w+4*jp+3}')
    for jp in range(2):
        e(f'buffer_store_dwordx4 v[{w+4*jp}:{w+4*jp+3}], v3, s[44:47], s12 offen offset:{gb*64 + jp*32}')
stamp_flush(1)
e('L2_end:')
e('s_endpgm')

def kd(name, nvgpr, accum):
    e('.section .rodata,"a"')
    e('.p2align 6')
    e(f'.amdhsa_kernel {name}')
    L.append(f'  .amdhsa_next_free_vgpr {nvgpr}')
    L.append('  .amdhsa_next_free_sgpr 64')
    L.append(f'  .amdhsa_accum_offset {accum}')
    L.append('  .amdhsa_group_segment_fixed_size 0')
    L.append('  .amdhsa_kernarg_size 72')
    L.append('  .amdhsa_user_sgpr_count 2')
    L.append('  .amdhsa_user_sgpr_kernarg_segment_ptr 1')
    L.append('  .amdhsa_system_sgpr_workgroup_id_x 1')
    e('.end_amdhsa_kernel')
kd('quip_s1_kernel', 256 if PROF else 208, 256 if PROF else 208)
kd(K2, 232+48, 232)
open(OUT, 'w').write('\n'.join(L) + '\n')
print('wrote', OUT, len(L), 'lines; LDS1', LDS1)
```

```python
import sys, os, math
def opt(name, d): return int(os.environ.get(name, str(d)))
D    = opt('D', 2)
PFC0 = opt('PFC0', 1)
PROF = opt('PROF', 0)
SLP  = opt('SLP', 4)
OUT  = sys.argv[1] if len(sys.argv) > 1 else 'standalone__weight_only_int_quip__prompt.s'
RV   = D + 2
NS   = D + 1
UNR  = NS * 2 // math.gcd(NS, 2)
PV   = 254

XR_OFF = 0
XR_BYTES = 2048 * 640 * 2
T2_OFF = 0x300000
T2_BYTES = 1536 * 640 * 2

L = []
def e(s=''):
    L.append('    ' + s if s and not s.endswith(':') and not s.startswith('.') and not s.startswith(';') else s)

CTS   = 0
CTC   = 8192
AR    = 16384
VRING = 32768
LDS1A = VRING + RV * 12288
R1B = 4; D1B = 2
LDS1B = R1B * 32768
JC = max(LDS1A, LDS1B, 120 * 1024)
LDS = JC + 128
FLAG_OFF = 0x600000

hdr = open('standalone__weight_only_int_quip__prompt.s.ref').read().split('\n')
for line in hdr:
    if line.startswith('; @launch'): break
    L.append(line)
L.append(f'; @launch grid=(256,1,1) block=(512,1,1) lds={LDS}')
e('.amdgcn_target "amdgcn-amd-amdhsa--gfx950"')
e('.text')

def stamp(idx):
    if not PROF: return
    e('s_memtime s[68:69]')
    if isinstance(idx, str):
        e(f's_mov_b32 m0, {idx}')
        e('s_waitcnt lgkmcnt(0)')
        e(f'v_writelane_b32 v{PV}, s68, m0')
        e(f's_add_u32 {idx}, {idx}, 1')
    else:
        e('s_waitcnt lgkmcnt(0)')
        e(f'v_writelane_b32 v{PV}, s68, {idx}')
def stamp_flush():
    if not PROF: return
    stamp(62)
    e('s_memrealtime s[68:69]')
    e('s_waitcnt lgkmcnt(0)')
    e(f'v_writelane_b32 v{PV}, s68, 63')
    e(f's_add_u32 s72, s32, {0x800000}')
    e('s_addc_u32 s73, s33, 0')
    e('s_and_b32 s73, s73, 0xffff')
    e('s_mov_b32 s74, 0x100000')
    e('s_mov_b32 s75, 0x00020000')
    e('s_lshl_b32 s68, s2, 11')
    e('s_lshl_b32 s69, s4, 8')
    e('s_add_u32 s68, s68, s69')
    e(f'v_lshlrev_b32 v{PV+1}, 2, v0')
    e(f'buffer_store_dword v{PV}, v{PV+1}, s[72:75], s68 offen')
def prof_start():
    if not PROF: return
    e(f'v_writelane_b32 v{PV}, s64, 0')
    e(f'v_writelane_b32 v{PV}, s66, 61')
    e('s_mov_b32 s70, 2')

def srd(d, lo, hi, nbytes, add=0):
    if add:
        e(f's_add_u32 s{d}, s{lo}, {add}')
        e(f's_addc_u32 s{d+1}, s{hi}, 0')
        e(f's_and_b32 s{d+1}, s{d+1}, 0xffff')
    else:
        e(f's_mov_b32 s{d}, s{lo}')
        e(f's_and_b32 s{d+1}, s{hi}, 0xffff')
    e(f's_mov_b32 s{d+2}, {nbytes}')
    e(f's_mov_b32 s{d+3}, 0x00020000')

def interleave(rd, mm, per):
    i = 0
    for m in mm:
        for _ in range(per):
            if i < len(rd): e(rd[i]); i += 1
        e(m)
    while i < len(rd): e(rd[i]); i += 1

def flag_zero():
    srd(56, 32, 33, 256*128, FLAG_OFF)
    e('v_mov_b32 v10, 0')
    e('v_lshlrev_b32 v11, 2, v0')
    e('s_lshl_b32 s60, s2, 7')
    e('s_mov_b32 exec_hi, 0')
    e('buffer_store_dword v10, v11, s[56:59], s60 offen sc1')
    e('s_mov_b64 exec, -1')
def jc_zero():
    e('v_mov_b32 v10, 0')
    e(f'v_mov_b32 v11, {JC}')
    e('ds_write_b32 v11, v10')
def flag_init_done():
    srd(56, 30, 31, 256)
    e('v_mov_b32 v10, 0')
    e('v_mov_b32 v11, 1')
    e('s_mov_b64 exec, 1')
    e('buffer_atomic_add v11, v10, s[56:59], 0 offen sc1')
    e('s_mov_b64 exec, -1')

def spin(name, srdreg, voff, soff, target, extra=''):
    e('s_mov_b32 s15, 0')
    e(f'{name}:')
    e(f'buffer_load_dword v4, v{voff}, s[{srdreg}:{srdreg+3}], {soff} offen{extra} sc1')
    e('s_waitcnt vmcnt(0)')
    e('v_readfirstlane_b32 s14, v4')
    e('s_add_u32 s15, s15, 1')
    e(f's_cmp_ge_u32 s14, {target}')
    e(f's_cbranch_scc1 {name}_ok')
    e(f's_sleep {SLP}')
    e('s_cmp_lt_u32 s15, 0x40000')
    e(f's_cbranch_scc1 {name}')
    e(f'{name}_ok:')

def init_probe():
    srd(48, 30, 31, 256)
    e('v_mov_b32 v2, 0')
    e('buffer_load_dword v5, v2, s[48:51], 0 offen sc1')

def signal(kind, tile_sreg):
    nm = f'Lsig_{kind}'
    e('v_mov_b32 v3, 1')
    e(f'v_mov_b32 v2, {JC}')
    e('s_waitcnt vmcnt(0)')
    e('s_mov_b64 exec, 1')
    e('ds_add_rtn_u32 v4, v2, v3')
    e('s_mov_b64 exec, -1')
    e('s_waitcnt lgkmcnt(0)')
    e('v_readfirstlane_b32 s14, v4')
    e('s_cmp_lg_u32 s14, 3')
    e(f's_cbranch_scc1 {nm}_done')
    e('v_readfirstlane_b32 s14, v5')
    e('v_mov_b32 v2, 0')
    e('s_cmp_ge_u32 s14, 256')
    e(f's_cbranch_scc1 {nm}_init_ok')
    spin(f'{nm}_init', 48, 2, '0', 256)
    srd(48, 32, 33, 256*128, FLAG_OFF)
    t = tile_sreg
    if kind == 't':
        e('v_lshrrev_b32 v2, 2, v0')
        e('v_and_b32 v4, 3, v0')
        e(f's_lshr_b32 s14, s{t}, 3')
        e(f's_and_b32 s15, s{t}, 7')
        e('s_lshl_b32 s15, s15, 5')
        e('s_add_u32 s14, s14, s15')
        e('v_lshlrev_b32 v2, 1, v2')
        e('v_lshl_add_u32 v2, v4, 3, v2')
        e('v_add_u32 v2, s14, v2')
        off = 4
    else:
        e('v_lshrrev_b32 v2, 3, v0')
        e('v_and_b32 v4, 7, v0')
        e(f's_lshr_b32 s14, s{t}, 2')
        e('s_lshl_b32 s14, s14, 1')
        e(f's_and_b32 s15, s{t}, 3')
        e('s_lshl_b32 s15, s15, 3')
        e('s_add_u32 s14, s14, s15')
        e('v_lshl_add_u32 v2, v4, 5, v2')
        e('v_add_u32 v2, s14, v2')
        off = 0
    e('v_lshlrev_b32 v2, 7, v2')
    e('s_mov_b64 exec, 0xffff')
    e(f'buffer_atomic_add v3, v2, s[48:51], 0 offen offset:{off} sc1')
    e('s_mov_b64 exec, -1')
    e(f'{nm}_done:')

K = 'standalone__weight_only_int_quip__prompt_kernel'
e(f'.globl {K}')
e('.p2align 8')
e(f'.type {K},@function')
e(f'{K}:')
e('s_cmp_ge_u32 s2, 256')
e('s_cbranch_scc1 L_end')
e('s_load_dwordx16 s[16:31], s[0:1], 0')
e('s_load_dwordx2 s[32:33], s[0:1], 64')
e('v_lshrrev_b32 v1, 6, v0')
e('v_and_b32 v0, 63, v0')
e('v_readfirstlane_b32 s4, v1')
e('s_and_b32 s5, s2, 7')
e('s_lshr_b32 s6, s2, 3')
if PROF:
    e('s_memtime s[64:65]')
    e('s_memrealtime s[66:67]')
e('s_cmp_ge_u32 s6, 20')
e('s_cbranch_scc1 L1b')

e('s_mul_i32 s7, s6, 52')
e('s_lshr_b32 s7, s7, 8')
e('s_mul_i32 s8, s7, 5')
e('s_sub_u32 s8, s6, s8')
e('s_and_b32 s9, s5, 1')
e('s_mul_i32 s9, s9, 5')
e('s_add_u32 s8, s8, s9')
e('s_lshr_b32 s9, s5, 1')
e('s_lshl_b32 s9, s9, 2')
e('s_add_u32 s7, s7, s9')
e('s_cmp_lt_u32 s4, 4')
e('s_cbranch_scc1 L1a_cons')

e('s_sub_u32 s11, s4, 4')
e('v_lshrrev_b32 v16, 4, v0')
e('v_and_b32 v17, 15, v0')
e('s_mul_i32 s12, s11, 192')
e('s_mul_i32 s13, s7, 192')
e('v_mov_b32 v31, 5')
for i in range(3):
    e(f'v_add_u32 v18, s12, v0')
    if i: e(f'v_add_u32 v18, {64*i}, v18')
    e('v_mul_u32_u24 v19, 5462, v18')
    e('v_lshrrev_b32 v19, 16, v19')
    e('v_mul_u32_u24 v28, 12, v19')
    e('v_sub_u32 v28, v18, v28')
    e('v_lshrrev_b32 v29, 1, v28')
    e('v_bfe_u32 v30, v19, 3, 1')
    e('v_sub_u32 v29, v29, v30')
    e('v_cmp_gt_i32 vcc, 0, v29')
    e('v_and_b32 v28, 1, v28')
    e('v_mul_u32_u24 v19, 3072, v19')
    e('v_cndmask_b32 v29, v29, v31, vcc')
    e('v_lshl_add_u32 v19, v28, 4, v19')
    e('v_lshl_add_u32 v19, v29, 5, v19')
    e(f'v_add_u32 v{24+i}, s13, v19')
e('s_lshl_b32 s12, s8, 6')
e('s_lshl_b32 s13, s11, 4')
e('s_add_u32 s12, s12, s13')
e('v_add_u32 v18, s12, v16')
e('v_mul_u32_u24 v18, 6144, v18')
e('v_lshl_add_u32 v20, v17, 4, v18')
for j in range(1, 4):
    e(f'v_add_u32 v{20+j}, {j*24576}, v20')
e('s_mov_b32 s13, 0')
e('s_mov_b32 s14, 0')
e('s_mov_b32 s35, 0')
e('s_mul_i32 s12, s11, 3072')
e(f's_add_u32 s12, s12, {VRING}')
e('s_mov_b32 s15, s12')
e(f's_add_u32 s34, s12, {RV*12288}')
e('s_waitcnt lgkmcnt(0)')
prof_start()
srd(40, 26, 27, 1536*1536*2)
srd(36, 18, 19, 640*1536*4)
QB = 64
def issue_loads(qset):
    for i in range(3):
        if i == 0: e('s_mov_b32 m0, s15')
        else:      e(f's_add_u32 m0, s15, {i*1024}')
        e('s_nop 0')
        e(f'buffer_load_dwordx4 v{24+i}, s[40:43], s14 offen lds')
    for j in range(4):
        r = QB + qset*16 + j*4
        e(f'buffer_load_dwordx4 v[{r}:{r+3}], v{20+j}, s[36:39], s13 offen')
    e('s_add_u32 s13, s13, 256')
    e('s_add_u32 s14, s14, 196608')
    e('s_add_u32 s15, s15, 12288')
    e('s_cmp_ge_u32 s15, s34')
    e('s_cselect_b32 s15, s12, s15')
stamp(1)
issue_loads(0)
e('s_lshl_b32 s9, s11, 11')
e(f's_add_u32 s9, s9, {AR}')
e('v_lshrrev_b32 v18, 1, v17')
e('v_lshrrev_b32 v19, 1, v16')
e('v_xor_b32 v18, v18, v19')
e('v_and_b32 v19, 1, v17')
e('v_lshlrev_b32 v19, 3, v19')
e('v_lshl_add_u32 v19, v16, 7, v19')
e('v_add_u32 v19, s9, v19')
for j in range(4):
    e(f'v_xor_b32 v32, {2*j}, v18')
    e(f'v_lshl_add_u32 v{28+j}, v32, 4, v19')
    if j: e(f'v_add_u32 v{28+j}, {j*512}, v{28+j}')
e('v_lshlrev_b32 v27, 4, v17')
for c in range(1, D):
    issue_loads(c)
def const_read():
    e('v_add_u32 v32, s35, v27')
    e(f'ds_read_b128 v[36:39], v32 offset:{CTS}')
    e(f'ds_read_b128 v[40:43], v32 offset:{CTC}')
    e('s_add_u32 s35, s35, 256')
e('s_barrier')
const_read()
def prod_iter(c, vm, loads, last=False):
    k = c % NS
    e(f's_waitcnt vmcnt({vm})')
    if loads:
        issue_loads((c + D) % NS)
    for j in range(4):
        r = QB + k*16 + j*4
        for i in range(4):
            e(f'v_cvt_f32_i32 v{r+i}, v{r+i}')
    e('s_waitcnt lgkmcnt(0)')
    for j in range(4):
        r = QB + k*16 + j*4
        for i in range(4):
            e(f'v_fma_f32 v{r+i}, v{r+i}, v{36+i}, v{40+i}')
        w = 44 + 2*j
        e(f'v_cvt_pk_bf16_f32 v{w}, v{r}, v{r+1}')
        e(f'v_cvt_pk_bf16_f32 v{w+1}, v{r+2}, v{r+3}')
        e(f'ds_write_b64 v{28+j}, v[{w}:{w+1}] offset:{(c&1)*8192}')
    if not last:
        const_read()
    e(f's_waitcnt lgkmcnt({0 if last else 2})')
    e('s_barrier')
nload = 24 - D
ntrips = nload // UNR
e('s_mov_b32 s10, 0')
e('L1a_ploop:')
for c in range(UNR):
    prod_iter(c, 7*(D-1), True)
e('s_add_u32 s10, s10, 1')
e(f's_cmp_lt_u32 s10, {ntrips}')
e('s_cbranch_scc1 L1a_ploop')
for c in range(ntrips*UNR, 24):
    prod_iter(c, 7*min(D-1, 23-c), c < nload, last=(c == 23))
e('s_barrier')
e('s_branch L2_load')

e('L1a_cons:')
e('s_and_b32 s11, s4, 1')
e('s_lshr_b32 s12, s4, 1')
e('s_lshl_b32 s10, s4, 9')
e('v_lshlrev_b32 v1, 3, v0')
e('v_add_u32 v1, s10, v1')
e('v_and_b32 v16, 15, v0')
e('v_lshrrev_b32 v17, 4, v0')
e('v_lshrrev_b32 v18, 1, v16')
e('v_xor_b32 v18, v17, v18')
e('v_xor_b32 v19, 4, v18')
e('v_lshlrev_b32 v18, 4, v18')
e('v_lshlrev_b32 v19, 4, v19')
e('s_lshl_b32 s13, s11, 12')
e(f's_add_u32 s13, s13, {AR}')
e('v_lshl_add_u32 v20, v16, 7, s13')
e('v_add_u32 v18, v18, v20')
e('v_add_u32 v19, v19, v20')
e('s_waitcnt lgkmcnt(0)')
prof_start()
jc_zero()
srd(48, 20, 21, 3072)
srd(52, 22, 23, 3072)
e('buffer_load_dwordx2 v[2:3], v1, s[48:51], 0 offen')
e('buffer_load_dwordx2 v[4:5], v1, s[52:55], 0 offen')
e('buffer_load_dwordx2 v[6:7], v1, s[48:51], 0 offen offset:2048')
e('buffer_load_dwordx2 v[8:9], v1, s[52:55], 0 offen offset:2048')
srd(44, 32, 33, T2_BYTES, T2_OFF)
e('v_lshlrev_b32 v1, 1, v1')
e('v_lshrrev_b32 v20, 2, v16')
e('v_and_b32 v21, 3, v16')
e('v_lshl_add_u32 v20, v17, 3, v20')
e('v_mul_u32_u24 v20, 192, v20')
e('v_and_b32 v22, 1, v17')
e('v_lshl_add_u32 v20, v22, 5, v20')
e('v_lshl_add_u32 v20, v21, 3, v20')
e('s_mul_i32 s13, s12, 96')
e('v_add_u32 v20, s13, v20')
e('s_mul_i32 s13, s12, 192')
e('v_mul_u32_u24 v22, s13, v22')
e('v_sub_u32 v21, v20, v22')
ACC = 24; FS = 48
for i in range(24):
    e(f'v_mov_b32 v{ACC+i}, 0')
for i in range(40):
    e(f'v_mov_b32 v{FS+40+i}, 0')
for half in range(2):
    s0 = 2 + 4*half; z0 = 4 + 4*half
    e(f's_waitcnt vmcnt({2-2*half})')
    e(f'v_lshlrev_b32 v128, 16, v{s0}')
    e(f'v_and_b32 v129, 0xffff0000, v{s0}')
    e(f'v_lshlrev_b32 v130, 16, v{s0+1}')
    e(f'v_and_b32 v131, 0xffff0000, v{s0+1}')
    e(f'v_lshlrev_b32 v132, 16, v{z0}')
    e(f'v_and_b32 v133, 0xffff0000, v{z0}')
    e(f'v_lshlrev_b32 v134, 16, v{z0+1}')
    e(f'v_and_b32 v135, 0xffff0000, v{z0+1}')
    for i in range(4):
        e(f'v_mul_f32 v{132+i}, -v{132+i}, v{128+i}')
    e(f'ds_write_b128 v1, v[128:131] offset:{CTS + half*4096}')
    e(f'ds_write_b128 v1, v[132:135] offset:{CTC + half*4096}')
    if half == 0: e('s_nop 1')
e('s_mov_b32 s14, 0')
e('s_mov_b32 s15, 0')
e('s_waitcnt lgkmcnt(0)')
e('s_barrier')
e('s_cmp_lg_u32 s4, 0')
e('s_cbranch_scc1 L1a_nz')
flag_zero()
e('L1a_nz:')
stamp(1)
def c1a_reads(u):
    out = []
    base = FS + 40*u
    for k32 in range(2):
        va = 18 + k32
        for et2 in range(2):
            r = base + (k32*2+et2)*4
            out.append(f'ds_read_b128 v[{r}:{r+3}], v{va} offset:{u*8192 + et2*2048}')
        for pp in range(3):
            r = base + 16 + (k32*3+pp)*4
            vb = 23 if pp == 2 else 22
            for t in range(2):
                out.append(f'ds_read_b64_tr_b16 v[{r+2*t}:{r+2*t+1}], v{vb} offset:{VRING + k32*6144 + t*768 + pp*32}')
    return out
def c1a_mfmas(u):
    out = []
    base = FS + 40*u
    for k32 in range(2):
        for pp in range(3):
            for et2 in range(2):
                a = base + (k32*2+et2)*4
                b = base + 16 + (k32*3+pp)*4
                c = ACC + (et2*3+pp)*4
                out.append(f'v_mfma_f32_16x16x32_bf16 v[{c}:{c+3}], v[{a}:{a+3}], v[{b}:{b+3}], v[{c}:{c+3}]')
    return out
e('L1a_cloop:')
for u in range(2):
    e('s_barrier')
    stamp('s70')
    e('v_add_u32 v22, s14, v20')
    e('v_add_u32 v23, s14, v21')
    e('s_add_u32 s14, s14, 12288')
    e(f's_cmp_ge_u32 s14, {RV*12288}')
    e('s_cselect_b32 s14, 0, s14')
    interleave(c1a_reads(u), c1a_mfmas(1-u), 2)
    e('s_waitcnt lgkmcnt(0)')
e('s_or_b32 s13, s15, s4')
e('s_cmp_lg_u32 s13, 0')
e('s_cbranch_scc1 L1a_ni')
e('s_waitcnt vmcnt(0)')
flag_init_done()
e('L1a_ni:')
e('s_add_u32 s15, s15, 1')
e('s_cmp_lt_u32 s15, 12')
e('s_cbranch_scc1 L1a_cloop')
init_probe()
e('s_barrier')
for m in c1a_mfmas(1): e(m)
e('v_and_b32 v22, 1, v17')
e('v_lshrrev_b32 v23, 1, v17')
e('v_lshlrev_b32 v1, 4, v16')
e('v_lshl_add_u32 v1, v22, 9, v1')
e('v_lshl_add_u32 v1, v23, 3, v1')
e('s_mul_i32 s13, s7, 60')
e('s_lshl_b32 s14, s8, 1')
e('s_add_u32 s13, s13, s14')
e('s_add_u32 s13, s13, s11')
e('s_lshl_b32 s13, s13, 11')
for pp in range(3):
    e(f's_mul_i32 s14, s12, 3')
    e(f's_add_u32 s14, s14, {pp}')
    e('s_lshr_b32 s15, s14, 1')
    e('s_mul_i32 s15, s15, 40960')
    e('s_and_b32 s14, s14, 1')
    e('s_lshl_b32 s14, s14, 8')
    e('s_add_u32 s14, s14, s15')
    e('s_add_u32 s14, s14, s13')
    if pp == 0: e('s_nop 3')
    for et2 in range(2):
        c = ACC + (et2*3+pp)*4
        r = FS + (pp*2+et2)*2
        e(f'v_cvt_pk_bf16_f32 v{r}, v{c}, v{c+1}')
        e(f'v_cvt_pk_bf16_f32 v{r+1}, v{c+2}, v{c+3}')
        e(f'buffer_store_dwordx2 v[{r}:{r+1}], v1, s[44:47], s14 offen offset:{et2*1024} sc1')
signal('t', 7)
e('s_branch L2_comp')

pfl = [0]
def pf_piece(nreg, c0expr):
    k = pfl[0]; pfl[0] += 1
    e(f's_mul_i32 s48, s{nreg}, 2979')
    e('s_lshr_b32 s48, s48, 20')
    e('s_mul_i32 s49, s48, 352')
    e(f's_sub_u32 s49, s{nreg}, s49')
    e(f's_add_u32 s48, s48, {c0expr}')
    e('s_cmp_ge_u32 s49, 160')
    e(f's_cbranch_scc1 L_pf_v{k}')
    e('s_mul_i32 s49, s49, 24576')
    e('s_lshl_b32 s48, s48, 8')
    e('s_add_u32 s48, s48, s49')
    e('buffer_load_dwordx4 v[140:143], v137, s[36:39], s48 offen')
    e(f's_branch L_pf_n{k}')
    e(f'L_pf_v{k}:')
    e('s_sub_u32 s49, s49, 160')
    e('s_mul_i32 s50, s49, 171')
    e('s_lshr_b32 s50, s50, 9')
    e('s_mul_i32 s51, s50, 3')
    e('s_sub_u32 s49, s49, s51')
    e('s_lshl_b32 s48, s48, 6')
    e('s_add_u32 s48, s48, s50')
    e('s_mul_i32 s48, s48, 3072')
    e('s_lshl_b32 s49, s49, 10')
    e('s_add_u32 s48, s48, s49')
    e('buffer_load_dwordx4 v[140:143], v136, s[40:43], s48 offen')
    e(f'L_pf_n{k}:')
PFS = opt('PFS', 9)
e('L1b:')
e('v_lshlrev_b32 v136, 4, v0')
e('v_lshrrev_b32 v137, 4, v0')
e('v_mul_u32_u24 v137, 6144, v137')
e('v_and_b32 v138, 15, v0')
e('v_lshl_add_u32 v137, v138, 4, v137')
e('s_waitcnt lgkmcnt(0)')
prof_start()
e('s_cmp_lg_u32 s4, 0')
e('s_cbranch_scc1 L1b_nz')
flag_zero()
jc_zero()
e('L1b_nz:')
srd(40, 26, 27, 1536*1536*2)
srd(36, 18, 19, 640*1536*4)
e('s_cmp_lt_u32 s6, 30')
e('s_cbranch_scc1 L1b_pf')
e('s_lshl_b32 s13, s5, 1')
e('s_add_u32 s13, s13, s6')
e('s_sub_u32 s13, s13, 30')
e('s_lshl_b32 s13, s13, 3')
e('s_add_u32 s13, s13, s4')
e('L_pfi_loop:')
pf_piece(13, PFS)
e('s_add_u32 s13, s13, 128')
e(f's_cmp_lt_u32 s13, {(24-PFS)*352}')
e('s_cbranch_scc1 L_pfi_loop')
e('s_cmp_lg_u32 s4, 0')
e('s_cbranch_scc1 L_pfi_ni')
e('s_waitcnt vmcnt(0)')
flag_init_done()
e('L_pfi_ni:')
e('s_barrier')
e('s_cmp_lt_u32 s4, 4')
e('s_cbranch_scc1 L2_comp')
e('s_branch L2_load')
e('L1b_pf:')
e('s_mul_i32 s13, s5, 10')
e('s_add_u32 s13, s13, s6')
e('s_sub_u32 s13, s13, 20')
e('s_lshl_b32 s13, s13, 3')
e('s_add_u32 s13, s13, s4')
for k in range(((PFS-PFC0)*352+639)//640):
    pf_piece(13, PFC0)
    e('s_add_u32 s13, s13, 640')
e('s_cmp_lg_u32 s4, 0')
e('s_cbranch_scc1 L1b_ni')
e('s_waitcnt vmcnt(0)')
flag_init_done()
e('L1b_ni:')
e('L1b_go:')
e('s_sub_u32 s9, s6, 20')
e('s_and_b32 s7, s9, 1')
e('s_lshl_b32 s8, s5, 1')
e('s_add_u32 s7, s7, s8')
e('s_lshr_b32 s8, s9, 1')
e('s_cmp_lt_u32 s4, 4')
e('s_cbranch_scc1 L1b_cons')
e('s_sub_u32 s11, s4, 4')
e('v_lshrrev_b32 v16, 3, v0')
e('v_and_b32 v17, 7, v0')
e('v_lshrrev_b32 v18, 4, v0')
e('s_lshl_b32 s12, s7, 7')
e('s_lshl_b32 s13, s11, 5')
e('s_add_u32 s12, s12, s13')
e('v_add_u32 v16, s12, v16')
e('v_mul_u32_u24 v16, 1280, v16')
e('v_xor_b32 v19, v17, v18')
e('v_xor_b32 v18, 4, v19')
e('v_lshl_add_u32 v20, v19, 4, v16')
e('v_lshl_add_u32 v21, v18, 4, v16')
e('v_add_u32 v21, 10240, v21')
e('v_add_u32 v22, 20480, v20')
e('v_add_u32 v23, 20480, v21')
e('v_lshrrev_b32 v16, 4, v0')
e('v_bfe_u32 v17, v0, 2, 2')
e('v_xor_b32 v17, v17, v16')
e('v_and_b32 v18, 3, v0')
e('s_lshl_b32 s12, s11, 4')
e('v_add_u32 v16, s12, v16')
e('v_mul_u32_u24 v16, 1280, v16')
e('v_lshl_add_u32 v16, v17, 6, v16')
e('v_lshl_add_u32 v16, v18, 4, v16')
e('s_lshl_b32 s12, s8, 8')
e('v_add_u32 v24, s12, v16')
for i in range(1, 4):
    e(f'v_add_u32 v{24+i}, {i*5120}, v24')
e('s_lshl_b32 s12, s11, 12')
e('s_mov_b32 s13, 0')
e('s_mov_b32 s14, 0')
e('s_mov_b32 s15, 0')
srd(36, 16, 17, 2048*640*2)
srd(40, 24, 25, 640*640*2)
def issue1b():
    e('s_add_u32 s34, s15, s12')
    for i in range(4):
        e(f's_add_u32 m0, s34, {i*1024}')
        e('s_nop 0')
        e(f'buffer_load_dwordx4 v{20+i}, s[36:39], s13 offen lds')
    for i in range(4):
        e(f's_add_u32 m0, s34, {16384+i*1024}')
        e('s_nop 0')
        e(f'buffer_load_dwordx4 v{24+i}, s[40:43], s14 offen lds')
    e('s_add_u32 s13, s13, 128')
    e('s_add_u32 s14, s14, 81920')
    e('s_add_u32 s15, s15, 32768')
    e(f's_and_b32 s15, s15, {R1B*32768-1}')
stamp(1)
for c in range(D1B):
    issue1b()
e('s_mov_b32 s35, 0')
e('L1b_ploop:')
issue1b()
e(f's_waitcnt vmcnt({8*D1B})')
e('s_barrier')
e('s_add_u32 s35, s35, 1')
e(f's_cmp_lt_u32 s35, {10-D1B}')
e('s_cbranch_scc1 L1b_ploop')
for k in range(D1B):
    e(f's_waitcnt vmcnt({8*(D1B-1-k)})')
    e('s_barrier')
e('s_barrier')
e('s_branch L2_load')

e('L1b_cons:')
e('s_and_b32 s11, s4, 1')
e('s_lshr_b32 s12, s4, 1')
e('v_and_b32 v16, 31, v0')
e('v_lshrrev_b32 v17, 5, v0')
e('v_bfe_u32 v18, v16, 1, 3')
e('v_xor_b32 v18, v17, v18')
e('s_lshl_b32 s13, s11, 13')
e('v_lshl_add_u32 v19, v16, 7, s13')
for k in range(4):
    e(f'v_xor_b32 v14, {2*k}, v18')
    e(f'v_lshl_add_u32 v{2+k}, v14, 4, v19')
e('v_bfe_u32 v18, v0, 2, 2')
e('v_and_b32 v19, 3, v0')
e('v_bfe_u32 v14, v0, 4, 1')
e('v_lshl_add_u32 v15, v17, 3, v18')
e('v_lshlrev_b32 v15, 8, v15')
e('v_lshl_add_u32 v15, v14, 5, v15')
e('v_lshl_add_u32 v15, v19, 3, v15')
e('v_add_u32 v15, 16384, v15')
e('s_lshl_b32 s13, s12, 1')
for et2 in range(2):
    e(f's_add_u32 s14, s13, {et2}')
    e('v_xor_b32 v14, s14, v18')
    e(f'v_lshl_add_u32 v{6+et2}, v14, 6, v15')
ACB = 16; FB = 80
for i in range(64):
    e(f'v_mov_b32 v{ACB+i}, 0')
e('s_waitcnt vmcnt(0)')
for i in range(64):
    e(f'v_mov_b32 v{FB+64+i}, 0')
srd(44, 32, 33, XR_BYTES, XR_OFF)
e('s_mov_b32 s14, 0')
e('s_mov_b32 s15, 0')
def c1b_reads(u):
    out = []
    for k in range(4):
        b = FB + 64*u + k*16
        for mt2 in range(2):
            out.append(f'ds_read_b128 v[{b+mt2*4}:{b+mt2*4+3}], v{8+k} offset:{mt2*4096}')
        for et2 in range(2):
            for t in range(2):
                r = b + 8 + et2*4 + 2*t
                out.append(f'ds_read_b64_tr_b16 v[{r}:{r+1}], v{12+et2} offset:{k*4096 + t*1024}')
    return out
def c1b_mfmas(u):
    out = []
    for k in range(4):
        b = FB + 64*u + k*16
        for et2 in range(2):
            for mt2 in range(2):
                c = ACB + (et2*2+mt2)*16
                out.append(f'v_mfma_f32_32x32x16_bf16 v[{c}:{c+15}], v[{b+8+et2*4}:{b+8+et2*4+3}], v[{b+mt2*4}:{b+mt2*4+3}], v[{c}:{c+15}]')
    return out
e('L1b_cloop:')
for u in range(2):
    e('s_barrier')
    stamp('s70')
    for k in range(4):
        e(f'v_add_u32 v{8+k}, s14, v{2+k}')
    for et2 in range(2):
        e(f'v_add_u32 v{12+et2}, s14, v{6+et2}')
    e('s_add_u32 s14, s14, 32768')
    e(f's_and_b32 s14, s14, {R1B*32768-1}')
    interleave(c1b_reads(u), c1b_mfmas(1-u), 2)
    e('s_waitcnt lgkmcnt(0)')
e('s_add_u32 s15, s15, 1')
e('s_cmp_lt_u32 s15, 5')
e('s_cbranch_scc1 L1b_cloop')
init_probe()
e('s_barrier')
for m in c1b_mfmas(1): e(m)
e('v_lshlrev_b32 v1, 4, v0')
e('s_lshl_b32 s13, s7, 2')
e('s_lshl_b32 s14, s11, 1')
e('s_add_u32 s13, s13, s14')
e('s_mul_i32 s13, s13, 20')
e('s_lshl_b32 s14, s8, 2')
e('s_add_u32 s13, s13, s14')
e('s_lshl_b32 s14, s12, 1')
e('s_add_u32 s13, s13, s14')
e('s_lshl_b32 s13, s13, 11')
e('s_add_u32 s14, s13, 40960')
e('s_nop 3')
for et2 in range(2):
    for mt2 in range(2):
        c = ACB + (et2*2+mt2)*16
        for t in range(2):
            r = FB + ((et2*2+mt2)*2+t)*4
            for d in range(4):
                e(f'v_cvt_pk_bf16_f32 v{r+d}, v{c+8*t+2*d}, v{c+8*t+2*d+1}')
            e(f'buffer_store_dwordx4 v[{r}:{r+3}], v1, s[44:47], s{13+mt2} offen offset:{et2*2048 + t*1024} sc1')
signal('x', 7)

def decode2():
    e('s_lshr_b32 s7, s5, 1')
    e('s_lshl_b32 s7, s7, 2')
    e('s_and_b32 s8, s6, 3')
    e('s_add_u32 s7, s7, s8')
    e('s_and_b32 s8, s5, 1')
    e('s_lshl_b32 s8, s8, 3')
    e('s_lshr_b32 s9, s6, 2')
    e('s_add_u32 s8, s8, s9')
    e('v_lshlrev_b32 v1, 4, v0')
    e('v_mov_b32 v3, 0')
    srd(48, 32, 33, 256*128, FLAG_OFF)
    e('s_lshl_b32 s13, s2, 7')
e('L2_comp:')
stamp(40)
decode2()
e('v_add_u32 v2, 0x10000, v1')
srd(36, 32, 33, XR_BYTES, XR_OFF)
srd(44, 28, 29, 2048*1536*2)
e('s_lshl_b32 s9, s7, 2')
e('s_add_u32 s9, s9, s4')
e('s_mul_i32 s10, s9, 40960')
e('s_cmp_lg_u32 s4, 0')
e('s_cbranch_scc1 L2_xwait')
spin('L2_pollx', 48, 3, 's13', 5)
e('L2_xwait:')
e('s_waitcnt vmcnt(0)')
e('s_barrier')
stamp(41)
XB = 8; AC2 = 168; TB = 216; NB = 3
XP = opt('XP', 4)
def xr_loads(c):
    out = []
    for i in range(4):
        r = XB + (4*c+i)*4
        out.append(([f's_add_u32 s14, s10, {c*4096}'] if i == 0 else []) + [f'buffer_load_dwordx4 v[{r}:{r+3}], v1, s[36:39], s14 offen offset:{i*1024} sc1'])
    return out
for c in range(XP):
    for g in xr_loads(c):
        for x in g: e(x)
stamp(42)
issued = XP
pending = []
def rd2(s):
    global issued, pending
    if s % 4 == 0:
        c = s // 4
        for g in pending:
            for x in g: e(x)
        pending = []
        e(f's_waitcnt vmcnt({4*(issued-c-1)})')
        e('s_barrier')
        stamp(43+c)
        if issued < 10:
            pending = xr_loads(issued)
            issued += 1
    for gb in range(3):
        r = TB + ((s % NB)*3 + gb)*4
        off = (gb*40 + s)*1024
        if off < 65536:
            e(f'ds_read_b128 v[{r}:{r+3}], v1 offset:{off}')
        else:
            e(f'ds_read_b128 v[{r}:{r+3}], v2 offset:{off-65536}')
rd2(0); rd2(1)
for s in range(40):
    e(f's_waitcnt lgkmcnt({3 if s < 39 else 0})')
    for gb in range(3):
        r = TB + ((s % NB)*3 + gb)*4
        x = XB + s*4
        a = AC2 + gb*16
        cc = '0' if s == 0 else f'v[{a}:{a+15}]'
        e(f'v_mfma_f32_32x32x16_bf16 v[{a}:{a+15}], v[{r}:{r+3}], v[{x}:{x+3}], {cc}')
        if gb == 0 and s + 2 < 40: rd2(s + 2)
        elif pending:
            for x_ in pending.pop(0): e(x_)
stamp(54)
e('v_and_b32 v3, 31, v0')
e('v_lshrrev_b32 v4, 5, v0')
e('s_lshl_b32 s9, s9, 5')
e('v_add_u32 v3, s9, v3')
e('v_mul_u32_u24 v3, 3072, v3')
e('v_lshl_add_u32 v3, v4, 4, v3')
e('s_mul_i32 s12, s8, 192')
e('s_nop 7')
for gb in range(3):
    a = AC2 + gb*16
    w = 8 + gb*8
    for d in range(8):
        e(f'v_cvt_pk_bf16_f32 v{w+d}, v{a+2*d}, v{a+2*d+1}')
    e('s_nop 1')
    for jp in range(2):
        e(f'v_permlane32_swap_b32 v{w+4*jp}, v{w+4*jp+2}')
        e(f'v_permlane32_swap_b32 v{w+4*jp+1}, v{w+4*jp+3}')
    for jp in range(2):
        e(f'buffer_store_dwordx4 v[{w+4*jp}:{w+4*jp+3}], v3, s[44:47], s12 offen offset:{gb*64 + jp*32}')
stamp_flush()
e('s_endpgm')

e('L2_load:')
e('s_cmp_lg_u32 s4, 4')
e('s_cbranch_scc1 L_end')
stamp(40)
decode2()
e('s_mul_i32 s12, s8, 122880')
e(f's_add_u32 s12, s12, {T2_OFF}')
e('s_add_u32 s40, s32, s12')
e('s_addc_u32 s41, s33, 0')
e('s_and_b32 s41, s41, 0xffff')
e('s_mov_b32 s42, 122880')
e('s_mov_b32 s43, 0x00020000')
e('s_barrier')
spin('L2_pollt', 48, 3, 's13', 10, ' offset:4')
stamp(41)
TP = opt('TP', 3)
def t2_loads(c):
    for gb in range(3):
        e(f's_mov_b32 s12, {(gb*40 + 4*c)*1024}')
        e('s_mov_b32 m0, s12')
        e('s_nop 0')
        for k in range(4):
            e(f'buffer_load_dwordx4 v1, s[40:43], s12 offen offset:{k*1024} sc1 lds')
for c in range(TP):
    t2_loads(c)
stamp(42)
for c in range(10):
    e(f's_waitcnt vmcnt({12*(min(10, c+TP)-c-1)})')
    e('s_barrier')
    if c + TP < 10: t2_loads(c + TP)
stamp_flush()
e('L_end:')
e('s_endpgm')

e('.section .rodata,"a"')
e('.p2align 6')
e(f'.amdhsa_kernel {K}')
L.append('  .amdhsa_next_free_vgpr 256')
L.append('  .amdhsa_next_free_sgpr 80')
L.append('  .amdhsa_accum_offset 256')
L.append('  .amdhsa_group_segment_fixed_size 0')
L.append('  .amdhsa_kernarg_size 72')
L.append('  .amdhsa_user_sgpr_count 2')
L.append('  .amdhsa_user_sgpr_kernarg_segment_ptr 1')
L.append('  .amdhsa_system_sgpr_workgroup_id_x 1')
e('.end_amdhsa_kernel')
open(OUT, 'w').write('\n'.join(L) + '\n')
print('wrote', OUT, len(L), 'lines; LDS', LDS)
```

```python
import sys, os, math
def opt(name, d): return int(os.environ.get(name, str(d)))
D    = opt('D', 2)
PFC0 = opt('PFC0', 1)
PROF = opt('PROF', 0)
SLP  = opt('SLP', 4)
YSF  = ['', ' sc1', ' nt', ' sc0 sc1', ' sc1 nt'][opt('YS', 0)]
OUT  = sys.argv[1] if len(sys.argv) > 1 else 'standalone__weight_only_int_quip__prompt.s'
RV   = D + 2
NS   = D + 1
UNR  = NS * 2 // math.gcd(NS, 2)
PV   = 254

XR_OFF = 0
XR_BYTES = 2048 * 640 * 2
T2_OFF = 0x300000
T2_BYTES = 1536 * 640 * 2

L = []
def e(s=''):
    L.append('    ' + s if s and not s.endswith(':') and not s.startswith('.') and not s.startswith(';') else s)

CTS   = 0
CTC   = 8192
AR    = 16384
VRING = 32768
LDS1A = VRING + RV * 12288
R1B = 4; D1B = 2
LDS1B = R1B * 32768
JC = max(LDS1A, LDS1B, 120 * 1024)
LDS = JC + 128
FLAG_OFF = 0x600000

hdr = open('standalone__weight_only_int_quip__prompt.s.ref').read().split('\n')
for line in hdr:
    if line.startswith('; @launch'): break
    L.append(line)
L.append(f'; @launch grid=(256,1,1) block=(512,1,1) lds={LDS}')
e('.amdgcn_target "amdgcn-amd-amdhsa--gfx950"')
e('.text')

def stamp(idx):
    if not PROF: return
    e('s_memtime s[68:69]')
    if isinstance(idx, str):
        e(f's_mov_b32 m0, {idx}')
        e('s_waitcnt lgkmcnt(0)')
        e(f'v_writelane_b32 v{PV}, s68, m0')
        e(f's_add_u32 {idx}, {idx}, 1')
    else:
        e('s_waitcnt lgkmcnt(0)')
        e(f'v_writelane_b32 v{PV}, s68, {idx}')
def stamp_flush():
    if not PROF: return
    stamp(62)
    e('s_memrealtime s[68:69]')
    e('s_waitcnt lgkmcnt(0)')
    e(f'v_writelane_b32 v{PV}, s68, 63')
    e(f's_add_u32 s72, s32, {0x800000}')
    e('s_addc_u32 s73, s33, 0')
    e('s_and_b32 s73, s73, 0xffff')
    e('s_mov_b32 s74, 0x100000')
    e('s_mov_b32 s75, 0x00020000')
    e('s_lshl_b32 s68, s2, 11')
    e('s_lshl_b32 s69, s4, 8')
    e('s_add_u32 s68, s68, s69')
    e(f'v_lshlrev_b32 v{PV+1}, 2, v0')
    e(f'buffer_store_dword v{PV}, v{PV+1}, s[72:75], s68 offen')
def prof_start():
    if not PROF: return
    e(f'v_writelane_b32 v{PV}, s64, 0')
    e(f'v_writelane_b32 v{PV}, s66, 61')
    e('s_mov_b32 s70, 2')

def srd(d, lo, hi, nbytes, add=0):
    if add:
        e(f's_add_u32 s{d}, s{lo}, {add}')
        e(f's_addc_u32 s{d+1}, s{hi}, 0')
        e(f's_and_b32 s{d+1}, s{d+1}, 0xffff')
    else:
        e(f's_mov_b32 s{d}, s{lo}')
        e(f's_and_b32 s{d+1}, s{hi}, 0xffff')
    e(f's_mov_b32 s{d+2}, {nbytes}')
    e(f's_mov_b32 s{d+3}, 0x00020000')

def interleave(rd, mm, per):
    i = 0
    for m in mm:
        for _ in range(per):
            if i < len(rd): e(rd[i]); i += 1
        e(m)
    while i < len(rd): e(rd[i]); i += 1

def flag_zero():
    srd(56, 32, 33, 256*128, FLAG_OFF)
    e('v_mov_b32 v10, 0')
    e('v_lshlrev_b32 v11, 2, v0')
    e('s_lshl_b32 s60, s2, 7')
    e('s_mov_b32 exec_hi, 0')
    e('buffer_store_dword v10, v11, s[56:59], s60 offen sc1')
    e('s_mov_b64 exec, -1')
def jc_zero():
    e('v_mov_b32 v10, 0')
    e(f'v_mov_b32 v11, {JC}')
    e('ds_write_b32 v11, v10')
def flag_init_done():
    srd(56, 30, 31, 256)
    e('v_mov_b32 v10, 0')
    e('v_mov_b32 v11, 1')
    e('s_mov_b64 exec, 1')
    e('buffer_atomic_add v11, v10, s[56:59], 0 offen sc1')
    e('s_mov_b64 exec, -1')

def spin(name, srdreg, voff, soff, target, extra=''):
    e('s_mov_b32 s15, 0')
    e(f'{name}:')
    e(f'buffer_load_dword v4, v{voff}, s[{srdreg}:{srdreg+3}], {soff} offen{extra} sc1')
    e('s_waitcnt vmcnt(0)')
    e('v_readfirstlane_b32 s14, v4')
    e('s_add_u32 s15, s15, 1')
    e(f's_cmp_ge_u32 s14, {target}')
    e(f's_cbranch_scc1 {name}_ok')
    e(f's_sleep {SLP}')
    e('s_cmp_lt_u32 s15, 0x40000')
    e(f's_cbranch_scc1 {name}')
    e(f'{name}_ok:')

def init_probe():
    srd(48, 30, 31, 256)
    e('v_mov_b32 v2, 0')
    e('buffer_load_dword v5, v2, s[48:51], 0 offen sc1')

def signal(kind, tile_sreg):
    nm = f'Lsig_{kind}'
    e('v_mov_b32 v3, 1')
    e(f'v_mov_b32 v2, {JC}')
    e('s_waitcnt vmcnt(0)')
    e('s_mov_b64 exec, 1')
    e('ds_add_rtn_u32 v4, v2, v3')
    e('s_mov_b64 exec, -1')
    e('s_waitcnt lgkmcnt(0)')
    e('v_readfirstlane_b32 s14, v4')
    e('s_cmp_lg_u32 s14, 3')
    e(f's_cbranch_scc1 {nm}_done')
    e('v_readfirstlane_b32 s14, v5')
    e('v_mov_b32 v2, 0')
    e('s_cmp_ge_u32 s14, 256')
    e(f's_cbranch_scc1 {nm}_init_ok')
    spin(f'{nm}_init', 48, 2, '0', 256)
    srd(48, 32, 33, 256*128, FLAG_OFF)
    t = tile_sreg
    if kind == 't':
        e('v_lshrrev_b32 v2, 2, v0')
        e('v_and_b32 v4, 3, v0')
        e(f's_lshr_b32 s14, s{t}, 3')
        e(f's_and_b32 s15, s{t}, 7')
        e('s_lshl_b32 s15, s15, 5')
        e('s_add_u32 s14, s14, s15')
        e('v_lshlrev_b32 v2, 1, v2')
        e('v_lshl_add_u32 v2, v4, 3, v2')
        e('v_add_u32 v2, s14, v2')
        off = 4
    else:
        e('v_lshrrev_b32 v2, 3, v0')
        e('v_and_b32 v4, 7, v0')
        e(f's_lshr_b32 s14, s{t}, 2')
        e('s_lshl_b32 s14, s14, 1')
        e(f's_and_b32 s15, s{t}, 3')
        e('s_lshl_b32 s15, s15, 3')
        e('s_add_u32 s14, s14, s15')
        e('v_lshl_add_u32 v2, v4, 5, v2')
        e('v_add_u32 v2, s14, v2')
        off = 0
    e('v_lshlrev_b32 v2, 7, v2')
    e('s_mov_b64 exec, 0xffff')
    e(f'buffer_atomic_add v3, v2, s[48:51], 0 offen offset:{off} sc1')
    e('s_mov_b64 exec, -1')
    e(f'{nm}_done:')

K = 'standalone__weight_only_int_quip__prompt_kernel'
e(f'.globl {K}')
e('.p2align 8')
e(f'.type {K},@function')
e(f'{K}:')
e('s_cmp_ge_u32 s2, 256')
e('s_cbranch_scc1 L_end')
e('s_load_dwordx16 s[16:31], s[0:1], 0')
e('s_load_dwordx2 s[32:33], s[0:1], 64')
e('v_lshrrev_b32 v1, 6, v0')
e('v_and_b32 v0, 63, v0')
e('v_readfirstlane_b32 s4, v1')
e('s_and_b32 s5, s2, 7')
e('s_lshr_b32 s6, s2, 3')
if PROF:
    e('s_memtime s[64:65]')
    e('s_memrealtime s[66:67]')
e('s_cmp_ge_u32 s6, 20')
e('s_cbranch_scc1 L1b')

e('s_mul_i32 s7, s6, 52')
e('s_lshr_b32 s7, s7, 8')
e('s_mul_i32 s8, s7, 5')
e('s_sub_u32 s8, s6, s8')
e('s_and_b32 s9, s5, 1')
e('s_mul_i32 s9, s9, 5')
e('s_add_u32 s8, s8, s9')
e('s_lshr_b32 s9, s5, 1')
e('s_lshl_b32 s9, s9, 2')
e('s_add_u32 s7, s7, s9')
e('s_cmp_lt_u32 s4, 4')
e('s_cbranch_scc1 L1a_cons')

if opt('PRP', 0): e(f"s_setprio {opt('PRP', 0)}")
e('s_sub_u32 s11, s4, 4')
e('v_lshrrev_b32 v16, 4, v0')
e('v_and_b32 v17, 15, v0')
e('s_mul_i32 s12, s11, 192')
e('s_mul_i32 s13, s7, 192')
e('v_mov_b32 v31, 5')
for i in range(3):
    e(f'v_add_u32 v18, s12, v0')
    if i: e(f'v_add_u32 v18, {64*i}, v18')
    e('v_mul_u32_u24 v19, 5462, v18')
    e('v_lshrrev_b32 v19, 16, v19')
    e('v_mul_u32_u24 v28, 12, v19')
    e('v_sub_u32 v28, v18, v28')
    e('v_lshrrev_b32 v29, 1, v28')
    e('v_bfe_u32 v30, v19, 3, 1')
    e('v_sub_u32 v29, v29, v30')
    e('v_cmp_gt_i32 vcc, 0, v29')
    e('v_and_b32 v28, 1, v28')
    e('v_mul_u32_u24 v19, 3072, v19')
    e('v_cndmask_b32 v29, v29, v31, vcc')
    e('v_lshl_add_u32 v19, v28, 4, v19')
    e('v_lshl_add_u32 v19, v29, 5, v19')
    e(f'v_add_u32 v{24+i}, s13, v19')
e('s_lshl_b32 s12, s8, 6')
e('s_lshl_b32 s13, s11, 4')
e('s_add_u32 s12, s12, s13')
e('v_add_u32 v18, s12, v16')
e('v_mul_u32_u24 v18, 6144, v18')
e('v_lshl_add_u32 v20, v17, 4, v18')
for j in range(1, 4):
    e(f'v_add_u32 v{20+j}, {j*24576}, v20')
e('s_mov_b32 s13, 0')
e('s_mov_b32 s14, 0')
e('s_mov_b32 s35, 0')
e('s_mul_i32 s12, s11, 3072')
e(f's_add_u32 s12, s12, {VRING}')
e('s_mov_b32 s15, s12')
e(f's_add_u32 s34, s12, {RV*12288}')
e('s_waitcnt lgkmcnt(0)')
prof_start()
srd(40, 26, 27, 1536*1536*2)
srd(36, 18, 19, 640*1536*4)
QB = 64
def issue_loads(qset):
    for i in range(3):
        if i == 0: e('s_mov_b32 m0, s15')
        else:      e(f's_add_u32 m0, s15, {i*1024}')
        e('s_nop 0')
        e(f'buffer_load_dwordx4 v{24+i}, s[40:43], s14 offen lds')
    for j in range(4):
        r = QB + qset*16 + j*4
        e(f'buffer_load_dwordx4 v[{r}:{r+3}], v{20+j}, s[36:39], s13 offen')
    e('s_add_u32 s13, s13, 256')
    e('s_add_u32 s14, s14, 196608')
    e('s_add_u32 s15, s15, 12288')
    e('s_cmp_ge_u32 s15, s34')
    e('s_cselect_b32 s15, s12, s15')
stamp(1)
issue_loads(0)
e('s_lshl_b32 s9, s11, 11')
e(f's_add_u32 s9, s9, {AR}')
e('v_lshrrev_b32 v18, 1, v17')
e('v_lshrrev_b32 v19, 1, v16')
e('v_xor_b32 v18, v18, v19')
e('v_and_b32 v19, 1, v17')
e('v_lshlrev_b32 v19, 3, v19')
e('v_lshl_add_u32 v19, v16, 7, v19')
e('v_add_u32 v19, s9, v19')
for j in range(4):
    e(f'v_xor_b32 v32, {2*j}, v18')
    e(f'v_lshl_add_u32 v{28+j}, v32, 4, v19')
    if j: e(f'v_add_u32 v{28+j}, {j*512}, v{28+j}')
e('v_lshlrev_b32 v27, 4, v17')
for c in range(1, D):
    issue_loads(c)
def const_read():
    e('v_add_u32 v32, s35, v27')
    e(f'ds_read_b128 v[36:39], v32 offset:{CTS}')
    e(f'ds_read_b128 v[40:43], v32 offset:{CTC}')
    e('s_add_u32 s35, s35, 256')
e('s_barrier')
const_read()
def prod_iter(c, vm, loads, lf, last=False):
    k = c % NS
    e(f's_waitcnt vmcnt({vm})')
    if loads and lf:
        issue_loads((c + D) % NS)
    for j in range(4):
        r = QB + k*16 + j*4
        for i in range(4):
            e(f'v_cvt_f32_i32 v{r+i}, v{r+i}')
    e('s_waitcnt lgkmcnt(0)')
    for j in range(4):
        r = QB + k*16 + j*4
        for i in range(4):
            e(f'v_fma_f32 v{r+i}, v{r+i}, v{36+i}, v{40+i}')
        w = 44 + 2*j
        e(f'v_cvt_pk_bf16_f32 v{w}, v{r}, v{r+1}')
        e(f'v_cvt_pk_bf16_f32 v{w+1}, v{r+2}, v{r+3}')
        e(f'ds_write_b64 v{28+j}, v[{w}:{w+1}] offset:{(c&1)*8192}')
    if not last:
        const_read()
    if loads and not lf:
        issue_loads((c + D) % NS)
    e(f's_waitcnt lgkmcnt({0 if last else 2})')
    e('s_barrier')
nload = 24 - D
ntrips = nload // UNR
def prod_loop(tag, lf):
    e('s_mov_b32 s10, 0')
    e(f'L1a_ploop{tag}:')
    for c in range(UNR):
        prod_iter(c, 7*(D-1), True, lf)
    e('s_add_u32 s10, s10, 1')
    e(f's_cmp_lt_u32 s10, {ntrips}')
    e(f's_cbranch_scc1 L1a_ploop{tag}')
    for c in range(ntrips*UNR, 24):
        prod_iter(c, 7*min(D-1, 23-c), c < nload, lf, last=(c == 23))
    e('s_barrier')
    e('s_branch L2_load')
MIX = opt('MIX', 1)
if MIX:
    e(f's_and_b32 s10, s11, {MIX}')
    e('s_cmp_lg_u32 s10, 0')
    e('s_cbranch_scc1 L1a_pB')
prod_loop('A', True)
if MIX:
    e('L1a_pB:')
    prod_loop('B', False)

e('L1a_cons:')
if opt('PRC', 0): e(f"s_setprio {opt('PRC', 0)}")
e('s_and_b32 s11, s4, 1')
e('s_lshr_b32 s12, s4, 1')
e('s_lshl_b32 s10, s4, 9')
e('v_lshlrev_b32 v1, 3, v0')
e('v_add_u32 v1, s10, v1')
e('v_and_b32 v16, 15, v0')
e('v_lshrrev_b32 v17, 4, v0')
e('v_lshrrev_b32 v18, 1, v16')
e('v_xor_b32 v18, v17, v18')
e('v_xor_b32 v19, 4, v18')
e('v_lshlrev_b32 v18, 4, v18')
e('v_lshlrev_b32 v19, 4, v19')
e('s_lshl_b32 s13, s11, 12')
e(f's_add_u32 s13, s13, {AR}')
e('v_lshl_add_u32 v20, v16, 7, s13')
e('v_add_u32 v18, v18, v20')
e('v_add_u32 v19, v19, v20')
e('s_waitcnt lgkmcnt(0)')
prof_start()
jc_zero()
srd(48, 20, 21, 3072)
srd(52, 22, 23, 3072)
e('buffer_load_dwordx2 v[2:3], v1, s[48:51], 0 offen')
e('buffer_load_dwordx2 v[4:5], v1, s[52:55], 0 offen')
e('buffer_load_dwordx2 v[6:7], v1, s[48:51], 0 offen offset:2048')
e('buffer_load_dwordx2 v[8:9], v1, s[52:55], 0 offen offset:2048')
srd(44, 32, 33, T2_BYTES, T2_OFF)
e('v_lshlrev_b32 v1, 1, v1')
e('v_lshrrev_b32 v20, 2, v16')
e('v_and_b32 v21, 3, v16')
e('v_lshl_add_u32 v20, v17, 3, v20')
e('v_mul_u32_u24 v20, 192, v20')
e('v_and_b32 v22, 1, v17')
e('v_lshl_add_u32 v20, v22, 5, v20')
e('v_lshl_add_u32 v20, v21, 3, v20')
e('s_mul_i32 s13, s12, 96')
e('v_add_u32 v20, s13, v20')
e('s_mul_i32 s13, s12, 192')
e('v_mul_u32_u24 v22, s13, v22')
e('v_sub_u32 v21, v20, v22')
ACC = 24; FS = 48
for i in range(24):
    e(f'v_mov_b32 v{ACC+i}, 0')
for i in range(40):
    e(f'v_mov_b32 v{FS+40+i}, 0')
for half in range(2):
    s0 = 2 + 4*half; z0 = 4 + 4*half
    e(f's_waitcnt vmcnt({2-2*half})')
    e(f'v_lshlrev_b32 v128, 16, v{s0}')
    e(f'v_and_b32 v129, 0xffff0000, v{s0}')
    e(f'v_lshlrev_b32 v130, 16, v{s0+1}')
    e(f'v_and_b32 v131, 0xffff0000, v{s0+1}')
    e(f'v_lshlrev_b32 v132, 16, v{z0}')
    e(f'v_and_b32 v133, 0xffff0000, v{z0}')
    e(f'v_lshlrev_b32 v134, 16, v{z0+1}')
    e(f'v_and_b32 v135, 0xffff0000, v{z0+1}')
    for i in range(4):
        e(f'v_mul_f32 v{132+i}, -v{132+i}, v{128+i}')
    e(f'ds_write_b128 v1, v[128:131] offset:{CTS + half*4096}')
    e(f'ds_write_b128 v1, v[132:135] offset:{CTC + half*4096}')
    if half == 0: e('s_nop 1')
e('s_mov_b32 s14, 0')
e('s_mov_b32 s15, 0')
e('s_waitcnt lgkmcnt(0)')
e('s_barrier')
e('s_cmp_lg_u32 s4, 0')
e('s_cbranch_scc1 L1a_nz')
flag_zero()
e('L1a_nz:')
stamp(1)
def c1a_reads(u):
    out = []
    base = FS + 40*u
    for k32 in range(2):
        va = 18 + k32
        for et2 in range(2):
            r = base + (k32*2+et2)*4
            out.append(f'ds_read_b128 v[{r}:{r+3}], v{va} offset:{u*8192 + et2*2048}')
        for pp in range(3):
            r = base + 16 + (k32*3+pp)*4
            vb = 23 if pp == 2 else 22
            for t in range(2):
                out.append(f'ds_read_b64_tr_b16 v[{r+2*t}:{r+2*t+1}], v{vb} offset:{VRING + k32*6144 + t*768 + pp*32}')
    return out
def c1a_mfmas(u):
    out = []
    base = FS + 40*u
    for k32 in range(2):
        for pp in range(3):
            for et2 in range(2):
                a = base + (k32*2+et2)*4
                b = base + 16 + (k32*3+pp)*4
                c = ACC + (et2*3+pp)*4
                out.append(f'v_mfma_f32_16x16x32_bf16 v[{c}:{c+3}], v[{a}:{a+3}], v[{b}:{b+3}], v[{c}:{c+3}]')
    return out
e('L1a_cloop:')
for u in range(2):
    e('s_barrier')
    stamp('s70')
    e('v_add_u32 v22, s14, v20')
    e('v_add_u32 v23, s14, v21')
    e('s_add_u32 s14, s14, 12288')
    e(f's_cmp_ge_u32 s14, {RV*12288}')
    e('s_cselect_b32 s14, 0, s14')
    interleave(c1a_reads(u), c1a_mfmas(1-u), 2)
    e('s_waitcnt lgkmcnt(0)')
e('s_or_b32 s13, s15, s4')
e('s_cmp_lg_u32 s13, 0')
e('s_cbranch_scc1 L1a_ni')
e('s_waitcnt vmcnt(0)')
flag_init_done()
e('L1a_ni:')
e('s_add_u32 s15, s15, 1')
e('s_cmp_lt_u32 s15, 12')
e('s_cbranch_scc1 L1a_cloop')
init_probe()
e('s_barrier')
for m in c1a_mfmas(1): e(m)
e('v_and_b32 v22, 1, v17')
e('v_lshrrev_b32 v23, 1, v17')
e('v_lshlrev_b32 v1, 4, v16')
e('v_lshl_add_u32 v1, v22, 9, v1')
e('v_lshl_add_u32 v1, v23, 10, v1')
e('s_mul_i32 s13, s7, 60')
e('s_lshl_b32 s14, s8, 1')
e('s_add_u32 s13, s13, s14')
e('s_add_u32 s13, s13, s11')
e('s_lshl_b32 s13, s13, 11')
for pp in range(3):
    e(f's_mul_i32 s14, s12, 3')
    e(f's_add_u32 s14, s14, {pp}')
    e('s_lshr_b32 s15, s14, 1')
    e('s_mul_i32 s15, s15, 40960')
    e('s_and_b32 s14, s14, 1')
    e('s_lshl_b32 s14, s14, 8')
    e('s_add_u32 s14, s14, s15')
    e('s_add_u32 s14, s14, s13')
    if pp == 0: e('s_nop 3')
    r = FS + pp*4
    for et2 in range(2):
        c = ACC + (et2*3+pp)*4
        e(f'v_cvt_pk_bf16_f32 v{r+2*et2}, v{c}, v{c+1}')
        e(f'v_cvt_pk_bf16_f32 v{r+2*et2+1}, v{c+2}, v{c+3}')
    e('s_nop 1')
    e(f'v_permlane32_swap_b32 v{r}, v{r+2}')
    e(f'v_permlane32_swap_b32 v{r+1}, v{r+3}')
    e(f'buffer_store_dwordx4 v[{r}:{r+3}], v1, s[44:47], s14 offen sc1')
signal('t', 7)
e('s_branch L2_comp')

pfl = [0]
def pf_piece(nreg, c0expr):
    k = pfl[0]; pfl[0] += 1
    e(f's_mul_i32 s48, s{nreg}, 2979')
    e('s_lshr_b32 s48, s48, 20')
    e('s_mul_i32 s49, s48, 352')
    e(f's_sub_u32 s49, s{nreg}, s49')
    e(f's_add_u32 s48, s48, {c0expr}')
    e('s_cmp_ge_u32 s49, 160')
    e(f's_cbranch_scc1 L_pf_v{k}')
    e('s_mul_i32 s49, s49, 24576')
    e('s_lshl_b32 s48, s48, 8')
    e('s_add_u32 s48, s48, s49')
    e('buffer_load_dwordx4 v[140:143], v137, s[36:39], s48 offen')
    e(f's_branch L_pf_n{k}')
    e(f'L_pf_v{k}:')
    e('s_sub_u32 s49, s49, 160')
    e('s_mul_i32 s50, s49, 171')
    e('s_lshr_b32 s50, s50, 9')
    e('s_mul_i32 s51, s50, 3')
    e('s_sub_u32 s49, s49, s51')
    e('s_lshl_b32 s48, s48, 6')
    e('s_add_u32 s48, s48, s50')
    e('s_mul_i32 s48, s48, 3072')
    e('s_lshl_b32 s49, s49, 10')
    e('s_add_u32 s48, s48, s49')
    e('buffer_load_dwordx4 v[140:143], v136, s[40:43], s48 offen')
    e(f'L_pf_n{k}:')
PFS = opt('PFS', 9)
e('L1b:')
e('v_lshlrev_b32 v136, 4, v0')
e('v_lshrrev_b32 v137, 4, v0')
e('v_mul_u32_u24 v137, 6144, v137')
e('v_and_b32 v138, 15, v0')
e('v_lshl_add_u32 v137, v138, 4, v137')
e('s_waitcnt lgkmcnt(0)')
prof_start()
e('s_cmp_lg_u32 s4, 0')
e('s_cbranch_scc1 L1b_nz')
flag_zero()
jc_zero()
e('L1b_nz:')
srd(40, 26, 27, 1536*1536*2)
srd(36, 18, 19, 640*1536*4)
e('s_cmp_lt_u32 s6, 30')
e('s_cbranch_scc1 L1b_pf')
e('s_lshl_b32 s13, s5, 1')
e('s_add_u32 s13, s13, s6')
e('s_sub_u32 s13, s13, 30')
e('s_lshl_b32 s13, s13, 3')
e('s_add_u32 s13, s13, s4')
e('L_pfi_loop:')
pf_piece(13, PFS)
if opt('PFT', 0): e(f"s_waitcnt vmcnt({opt('PFT', 0)})")
e('s_add_u32 s13, s13, 128')
e(f's_cmp_lt_u32 s13, {(24-PFS)*352}')
e('s_cbranch_scc1 L_pfi_loop')
e('s_cmp_lg_u32 s4, 0')
e('s_cbranch_scc1 L_pfi_ni')
e('s_waitcnt vmcnt(0)')
flag_init_done()
e('L_pfi_ni:')
e('s_barrier')
e('s_cmp_lt_u32 s4, 4')
e('s_cbranch_scc1 L2_comp')
e('s_branch L2_load')
e('L1b_pf:')
PFW = opt('PFW', 8)
if PFW == 4:
    e('s_cmp_ge_u32 s4, 4')
    e('s_cbranch_scc1 L1b_go')
e('s_mul_i32 s13, s5, 10')
e('s_add_u32 s13, s13, s6')
e('s_sub_u32 s13, s13, 20')
e(f's_mul_i32 s13, s13, {PFW}')
e('s_add_u32 s13, s13, s4')
for k in range(((PFS-PFC0)*352+80*PFW-1)//(80*PFW)):
    pf_piece(13, PFC0)
    e(f's_add_u32 s13, s13, {80*PFW}')
e('s_cmp_lg_u32 s4, 0')
e('s_cbranch_scc1 L1b_ni')
e('s_waitcnt vmcnt(0)')
flag_init_done()
e('L1b_ni:')
e('L1b_go:')
e('s_sub_u32 s9, s6, 20')
e('s_and_b32 s7, s9, 1')
e('s_lshl_b32 s8, s5, 1')
e('s_add_u32 s7, s7, s8')
e('s_lshr_b32 s8, s9, 1')
e('s_cmp_lt_u32 s4, 4')
e('s_cbranch_scc1 L1b_cons')
e('s_sub_u32 s11, s4, 4')
e('v_lshrrev_b32 v16, 3, v0')
e('v_and_b32 v17, 7, v0')
e('v_lshrrev_b32 v18, 4, v0')
e('s_lshl_b32 s12, s7, 7')
e('s_lshl_b32 s13, s11, 5')
e('s_add_u32 s12, s12, s13')
e('v_add_u32 v16, s12, v16')
e('v_mul_u32_u24 v16, 1280, v16')
e('v_xor_b32 v19, v17, v18')
e('v_xor_b32 v18, 4, v19')
e('v_lshl_add_u32 v20, v19, 4, v16')
e('v_lshl_add_u32 v21, v18, 4, v16')
e('v_add_u32 v21, 10240, v21')
e('v_add_u32 v22, 20480, v20')
e('v_add_u32 v23, 20480, v21')
e('v_lshrrev_b32 v16, 4, v0')
e('v_bfe_u32 v17, v0, 2, 2')
e('v_xor_b32 v17, v17, v16')
e('v_and_b32 v18, 3, v0')
e('s_lshl_b32 s12, s11, 4')
e('v_add_u32 v16, s12, v16')
e('v_mul_u32_u24 v16, 1280, v16')
e('v_lshl_add_u32 v16, v17, 6, v16')
e('v_lshl_add_u32 v16, v18, 4, v16')
e('s_lshl_b32 s12, s8, 8')
e('v_add_u32 v24, s12, v16')
for i in range(1, 4):
    e(f'v_add_u32 v{24+i}, {i*5120}, v24')
e('s_lshl_b32 s12, s11, 12')
e('s_mov_b32 s13, 0')
e('s_mov_b32 s14, 0')
e('s_mov_b32 s15, 0')
srd(36, 16, 17, 2048*640*2)
srd(40, 24, 25, 640*640*2)
def issue1b():
    e('s_add_u32 s34, s15, s12')
    for i in range(4):
        e(f's_add_u32 m0, s34, {i*1024}')
        e('s_nop 0')
        e(f'buffer_load_dwordx4 v{20+i}, s[36:39], s13 offen lds')
    for i in range(4):
        e(f's_add_u32 m0, s34, {16384+i*1024}')
        e('s_nop 0')
        e(f'buffer_load_dwordx4 v{24+i}, s[40:43], s14 offen lds')
    e('s_add_u32 s13, s13, 128')
    e('s_add_u32 s14, s14, 81920')
    e('s_add_u32 s15, s15, 32768')
    e(f's_and_b32 s15, s15, {R1B*32768-1}')
stamp(1)
for c in range(D1B):
    issue1b()
e('s_mov_b32 s35, 0')
e('L1b_ploop:')
issue1b()
e(f's_waitcnt vmcnt({8*D1B})')
e('s_barrier')
e('s_add_u32 s35, s35, 1')
e(f's_cmp_lt_u32 s35, {10-D1B}')
e('s_cbranch_scc1 L1b_ploop')
for k in range(D1B):
    e(f's_waitcnt vmcnt({8*(D1B-1-k)})')
    e('s_barrier')
e('s_barrier')
e('s_branch L2_load')

e('L1b_cons:')
e('s_and_b32 s11, s4, 1')
e('s_lshr_b32 s12, s4, 1')
e('v_and_b32 v16, 31, v0')
e('v_lshrrev_b32 v17, 5, v0')
e('v_bfe_u32 v18, v16, 1, 3')
e('v_xor_b32 v18, v17, v18')
e('s_lshl_b32 s13, s11, 13')
e('v_lshl_add_u32 v19, v16, 7, s13')
for k in range(4):
    e(f'v_xor_b32 v14, {2*k}, v18')
    e(f'v_lshl_add_u32 v{2+k}, v14, 4, v19')
e('v_bfe_u32 v18, v0, 2, 2')
e('v_and_b32 v19, 3, v0')
e('v_bfe_u32 v14, v0, 4, 1')
e('v_lshl_add_u32 v15, v17, 3, v18')
e('v_lshlrev_b32 v15, 8, v15')
e('v_lshl_add_u32 v15, v14, 5, v15')
e('v_lshl_add_u32 v15, v19, 3, v15')
e('v_add_u32 v15, 16384, v15')
e('s_lshl_b32 s13, s12, 1')
for et2 in range(2):
    e(f's_add_u32 s14, s13, {et2}')
    e('v_xor_b32 v14, s14, v18')
    e(f'v_lshl_add_u32 v{6+et2}, v14, 6, v15')
ACB = 16; FB = 80
for i in range(64):
    e(f'v_mov_b32 v{ACB+i}, 0')
e('s_waitcnt vmcnt(0)')
for i in range(64):
    e(f'v_mov_b32 v{FB+64+i}, 0')
srd(44, 32, 33, XR_BYTES, XR_OFF)
e('s_mov_b32 s14, 0')
e('s_mov_b32 s15, 0')
def c1b_reads(u):
    out = []
    for k in range(4):
        b = FB + 64*u + k*16
        for mt2 in range(2):
            out.append(f'ds_read_b128 v[{b+mt2*4}:{b+mt2*4+3}], v{8+k} offset:{mt2*4096}')
        for et2 in range(2):
            for t in range(2):
                r = b + 8 + et2*4 + 2*t
                out.append(f'ds_read_b64_tr_b16 v[{r}:{r+1}], v{12+et2} offset:{k*4096 + t*1024}')
    return out
def c1b_mfmas(u):
    out = []
    for k in range(4):
        b = FB + 64*u + k*16
        for et2 in range(2):
            for mt2 in range(2):
                c = ACB + (et2*2+mt2)*16
                out.append(f'v_mfma_f32_32x32x16_bf16 v[{c}:{c+15}], v[{b+8+et2*4}:{b+8+et2*4+3}], v[{b+mt2*4}:{b+mt2*4+3}], v[{c}:{c+15}]')
    return out
e('L1b_cloop:')
for u in range(2):
    e('s_barrier')
    stamp('s70')
    for k in range(4):
        e(f'v_add_u32 v{8+k}, s14, v{2+k}')
    for et2 in range(2):
        e(f'v_add_u32 v{12+et2}, s14, v{6+et2}')
    e('s_add_u32 s14, s14, 32768')
    e(f's_and_b32 s14, s14, {R1B*32768-1}')
    interleave(c1b_reads(u), c1b_mfmas(1-u), 2)
    e('s_waitcnt lgkmcnt(0)')
e('s_add_u32 s15, s15, 1')
e('s_cmp_lt_u32 s15, 5')
e('s_cbranch_scc1 L1b_cloop')
init_probe()
e('s_barrier')
for m in c1b_mfmas(1): e(m)
e('v_lshlrev_b32 v1, 4, v0')
e('s_lshl_b32 s13, s7, 2')
e('s_lshl_b32 s14, s11, 1')
e('s_add_u32 s13, s13, s14')
e('s_mul_i32 s13, s13, 20')
e('s_lshl_b32 s14, s8, 2')
e('s_add_u32 s13, s13, s14')
e('s_lshl_b32 s14, s12, 1')
e('s_add_u32 s13, s13, s14')
e('s_lshl_b32 s13, s13, 11')
e('s_add_u32 s14, s13, 40960')
e('s_nop 3')
for et2 in range(2):
    for mt2 in range(2):
        c = ACB + (et2*2+mt2)*16
        for t in range(2):
            r = FB + ((et2*2+mt2)*2+t)*4
            for d in range(4):
                e(f'v_cvt_pk_bf16_f32 v{r+d}, v{c+8*t+2*d}, v{c+8*t+2*d+1}')
            e(f'buffer_store_dwordx4 v[{r}:{r+3}], v1, s[44:47], s{13+mt2} offen offset:{et2*2048 + t*1024} sc1')
signal('x', 7)

def decode2():
    e('s_lshr_b32 s7, s5, 1')
    e('s_lshl_b32 s7, s7, 2')
    e('s_and_b32 s8, s6, 3')
    e('s_add_u32 s7, s7, s8')
    e('s_and_b32 s8, s5, 1')
    e('s_lshl_b32 s8, s8, 3')
    e('s_lshr_b32 s9, s6, 2')
    e('s_add_u32 s8, s8, s9')
    e('v_lshlrev_b32 v1, 4, v0')
    e('v_mov_b32 v3, 0')
    srd(48, 32, 33, 256*128, FLAG_OFF)
    e('s_lshl_b32 s13, s2, 7')
e('L2_comp:')
if opt('PRP', 0) or opt('PRC', 0): e('s_setprio 0')
stamp(40)
decode2()
e('v_add_u32 v2, 0x10000, v1')
srd(36, 32, 33, XR_BYTES, XR_OFF)
srd(44, 28, 29, 2048*1536*2)
e('s_lshl_b32 s9, s7, 2')
e('s_add_u32 s9, s9, s4')
e('s_mul_i32 s10, s9, 40960')
e('s_cmp_lg_u32 s4, 0')
e('s_cbranch_scc1 L2_xwait')
spin('L2_pollx', 48, 3, 's13', 5)
e('L2_xwait:')
e('s_waitcnt vmcnt(0)')
e('s_barrier')
stamp(41)
XB = 8; AC2 = 168; TB = 216; NB = 3
XP = opt('XP', 4)
def xr_loads(c):
    out = []
    for i in range(4):
        r = XB + (4*c+i)*4
        out.append(([f's_add_u32 s14, s10, {c*4096}'] if i == 0 else []) + [f'buffer_load_dwordx4 v[{r}:{r+3}], v1, s[36:39], s14 offen offset:{i*1024} sc1'])
    return out
for c in range(XP):
    for g in xr_loads(c):
        for x in g: e(x)
stamp(42)
issued = XP
pending = []
def rd2(s):
    global issued, pending
    if s % 4 == 0:
        c = s // 4
        for g in pending:
            for x in g: e(x)
        pending = []
        e(f's_waitcnt vmcnt({4*(issued-c-1)})')
        e('s_barrier')
        stamp(43+c)
        if issued < 10:
            pending = xr_loads(issued)
            issued += 1
    for gb in range(3):
        r = TB + ((s % NB)*3 + gb)*4
        off = (gb*40 + s)*1024
        if off < 65536:
            e(f'ds_read_b128 v[{r}:{r+3}], v1 offset:{off}')
        else:
            e(f'ds_read_b128 v[{r}:{r+3}], v2 offset:{off-65536}')
rd2(0); rd2(1)
for s in range(40):
    e(f's_waitcnt lgkmcnt({3 if s < 39 else 0})')
    for gb in range(3):
        r = TB + ((s % NB)*3 + gb)*4
        x = XB + s*4
        a = AC2 + gb*16
        cc = '0' if s == 0 else f'v[{a}:{a+15}]'
        e(f'v_mfma_f32_32x32x16_bf16 v[{a}:{a+15}], v[{r}:{r+3}], v[{x}:{x+3}], {cc}')
        if gb == 0 and s + 2 < 40: rd2(s + 2)
        elif pending:
            for x_ in pending.pop(0): e(x_)
stamp(54)
e('v_and_b32 v3, 31, v0')
e('v_lshrrev_b32 v4, 5, v0')
e('s_lshl_b32 s9, s9, 5')
e('v_add_u32 v3, s9, v3')
e('v_mul_u32_u24 v3, 3072, v3')
e('v_lshl_add_u32 v3, v4, 4, v3')
e('s_mul_i32 s12, s8, 192')
e('s_nop 7')
for gb in range(3):
    a = AC2 + gb*16
    w = 8 + gb*8
    for d in range(8):
        e(f'v_cvt_pk_bf16_f32 v{w+d}, v{a+2*d}, v{a+2*d+1}')
    e('s_nop 1')
    for jp in range(2):
        e(f'v_permlane32_swap_b32 v{w+4*jp}, v{w+4*jp+2}')
        e(f'v_permlane32_swap_b32 v{w+4*jp+1}, v{w+4*jp+3}')
    for jp in range(2):
        e(f'buffer_store_dwordx4 v[{w+4*jp}:{w+4*jp+3}], v3, s[44:47], s12 offen offset:{gb*64 + jp*32}{YSF}')
stamp_flush()
e('s_endpgm')

e('L2_load:')
if opt('PRP', 0) or opt('PRC', 0): e('s_setprio 0')
e('s_cmp_lg_u32 s4, 4')
e('s_cbranch_scc1 L_end')
stamp(40)
decode2()
e('s_mul_i32 s12, s8, 122880')
e(f's_add_u32 s12, s12, {T2_OFF}')
e('s_add_u32 s40, s32, s12')
e('s_addc_u32 s41, s33, 0')
e('s_and_b32 s41, s41, 0xffff')
e('s_mov_b32 s42, 122880')
e('s_mov_b32 s43, 0x00020000')
e('s_barrier')
spin('L2_pollt', 48, 3, 's13', 10, ' offset:4')
stamp(41)
TP = opt('TP', 3)
def t2_loads(c):
    for gb in range(3):
        e(f's_mov_b32 s12, {(gb*40 + 4*c)*1024}')
        e('s_mov_b32 m0, s12')
        e('s_nop 0')
        for k in range(4):
            e(f'buffer_load_dwordx4 v1, s[40:43], s12 offen offset:{k*1024} sc1 lds')
for c in range(TP):
    t2_loads(c)
stamp(42)
for c in range(10):
    e(f's_waitcnt vmcnt({12*(min(10, c+TP)-c-1)})')
    e('s_barrier')
    if c + TP < 10: t2_loads(c + TP)
stamp_flush()
e('L_end:')
e('s_endpgm')

e('.section .rodata,"a"')
e('.p2align 6')
e(f'.amdhsa_kernel {K}')
L.append('  .amdhsa_next_free_vgpr 256')
L.append('  .amdhsa_next_free_sgpr 80')
L.append('  .amdhsa_accum_offset 256')
L.append('  .amdhsa_group_segment_fixed_size 0')
L.append('  .amdhsa_float_denorm_mode_32 3')
L.append('  .amdhsa_kernarg_size 72')
L.append('  .amdhsa_user_sgpr_count 2')
L.append('  .amdhsa_user_sgpr_kernarg_segment_ptr 1')
L.append('  .amdhsa_system_sgpr_workgroup_id_x 1')
e('.end_amdhsa_kernel')
open(OUT, 'w').write('\n'.join(L) + '\n')
print('wrote', OUT, len(L), 'lines; LDS', LDS)
```

```python
import sys, os, math
def opt(name, d): return int(os.environ.get(name, str(d)))
D    = opt('D', 2)
PFC0 = opt('PFC0', 1)
PROF = opt('PROF', 0)
SLP  = opt('SLP', 4)
YSF  = ['', ' sc1', ' nt', ' sc0 sc1', ' sc1 nt'][opt('YS', 0)]
OUT  = sys.argv[1] if len(sys.argv) > 1 else 'standalone__weight_only_int_quip__prompt.s'
RV   = D + 2
NS   = D + 1
UNR  = NS * 2 // math.gcd(NS, 2)
PV   = 254
HS   = 76 if PROF else 64

XR_OFF = 0
XR_BYTES = 2048 * 640 * 2
T2_OFF = 0x300000
T2_BYTES = 1536 * 640 * 2

L = []
def e(s=''):
    L.append('    ' + s if s and not s.endswith(':') and not s.startswith('.') and not s.startswith(';') else s)

CTS   = 0
CTC   = 8192
AR    = 16384
VRING = 49152
CS    = 12
WQ_OFF = 0x700000
WQ_BYTES = 10 * 24 * 8192
LDS1A = VRING + RV * 12288
R1B = 4; D1B = 2
LDS1B = R1B * 32768
JC = max(LDS1A, LDS1B, 120 * 1024)
LDS = JC + 128
FLAG_OFF = 0x600000

hdr = open('standalone__weight_only_int_quip__prompt.s.ref').read().split('\n')
for line in hdr:
    if line.startswith('; @launch'): break
    L.append(line)
L.append(f'; @launch grid=(256,1,1) block=(512,1,1) lds={LDS}')
e('.amdgcn_target "amdgcn-amd-amdhsa--gfx950"')
e('.text')

def stamp(idx):
    if not PROF: return
    e('s_memtime s[68:69]')
    if isinstance(idx, str):
        e(f's_mov_b32 m0, {idx}')
        e('s_waitcnt lgkmcnt(0)')
        e(f'v_writelane_b32 v{PV}, s68, m0')
        e(f's_add_u32 {idx}, {idx}, 1')
    else:
        e('s_waitcnt lgkmcnt(0)')
        e(f'v_writelane_b32 v{PV}, s68, {idx}')
def stamp_flush():
    if not PROF: return
    stamp(62)
    e('s_memrealtime s[68:69]')
    e('s_waitcnt lgkmcnt(0)')
    e(f'v_writelane_b32 v{PV}, s68, 63')
    e(f's_add_u32 s72, s32, {0xA00000}')
    e('s_addc_u32 s73, s33, 0')
    e('s_and_b32 s73, s73, 0xffff')
    e('s_mov_b32 s74, 0x100000')
    e('s_mov_b32 s75, 0x00020000')
    e('s_lshl_b32 s68, s2, 11')
    e('s_lshl_b32 s69, s4, 8')
    e('s_add_u32 s68, s68, s69')
    e(f'v_lshlrev_b32 v{PV+1}, 2, v0')
    e(f'buffer_store_dword v{PV}, v{PV+1}, s[72:75], s68 offen')
def prof_start():
    if not PROF: return
    e(f'v_mov_b32 v{PV}, -1')
    e(f'v_writelane_b32 v{PV}, s64, 0')
    e(f'v_writelane_b32 v{PV}, s66, 61')
    e('s_mov_b32 s70, 2')

def srd(d, lo, hi, nbytes, add=0):
    if add:
        e(f's_add_u32 s{d}, s{lo}, {add}')
        e(f's_addc_u32 s{d+1}, s{hi}, 0')
        e(f's_and_b32 s{d+1}, s{d+1}, 0xffff')
    else:
        e(f's_mov_b32 s{d}, s{lo}')
        e(f's_and_b32 s{d+1}, s{hi}, 0xffff')
    e(f's_mov_b32 s{d+2}, {nbytes}')
    e(f's_mov_b32 s{d+3}, 0x00020000')

def interleave(rd, mm, per):
    i = 0
    for m in mm:
        for _ in range(per):
            if i < len(rd): e(rd[i]); i += 1
        e(m)
    while i < len(rd): e(rd[i]); i += 1

def flag_zero():
    srd(56, 32, 33, 256*128, FLAG_OFF)
    e('v_mov_b32 v132, 0')
    e('v_lshlrev_b32 v133, 2, v0')
    e('s_mul_i32 s60, s5, 12')
    e('s_add_u32 s60, s60, s6')
    e('s_sub_u32 s60, s60, 20')
    e('s_lshl_b32 s60, s60, 7')
    e('s_mov_b32 exec_hi, 0')
    for k in range(3):
        e('buffer_store_dword v132, v133, s[56:59], s60 offen sc1')
        e('s_add_u32 s60, s60, 12288')
    e('s_mov_b64 exec, -1')
def jc_zero():
    e('v_mov_b32 v10, 0')
    e(f'v_mov_b32 v11, {JC}')
    e('ds_write_b32 v11, v10')
def flag_init_done():
    srd(56, 30, 31, 256)
    e('v_mov_b32 v132, 0')
    e('v_mov_b32 v133, 1')
    e('s_mov_b64 exec, 1')
    e('buffer_atomic_add v133, v132, s[56:59], 0 offen sc1')
    e('s_mov_b64 exec, -1')

def spin(name, srdreg, voff, soff, target, extra='', ta=14, tb=15, vt=4):
    e(f's_mov_b32 s{tb}, 0')
    e(f'{name}:')
    e(f'buffer_load_dword v{vt}, v{voff}, s[{srdreg}:{srdreg+3}], {soff} offen{extra} sc1')
    e('s_waitcnt vmcnt(0)')
    e(f'v_readfirstlane_b32 s{ta}, v{vt}')
    e(f's_add_u32 s{tb}, s{tb}, 1')
    e(f's_cmp_ge_u32 s{ta}, {target}')
    e(f's_cbranch_scc1 {name}_ok')
    e(f's_sleep {SLP}')
    e(f's_cmp_lt_u32 s{tb}, 0x40000')
    e(f's_cbranch_scc1 {name}')
    e(f'{name}_ok:')

def init_probe():
    srd(48, 30, 31, 256)
    e('v_mov_b32 v2, 0')
    e('buffer_load_dword v5, v2, s[48:51], 0 offen sc1')

def signal(kind, tile_sreg):
    nm = f'Lsig_{kind}'
    e('v_mov_b32 v3, 1')
    e(f'v_mov_b32 v2, {JC}')
    e('s_waitcnt vmcnt(0)')
    e('s_mov_b64 exec, 1')
    e('ds_add_rtn_u32 v4, v2, v3')
    e('s_mov_b64 exec, -1')
    e('s_waitcnt lgkmcnt(0)')
    e('v_readfirstlane_b32 s14, v4')
    e('s_cmp_lg_u32 s14, 3')
    e(f's_cbranch_scc1 {nm}_done')
    e('v_readfirstlane_b32 s14, v5')
    e('v_mov_b32 v2, 0')
    e('s_cmp_ge_u32 s14, 96')
    e(f's_cbranch_scc1 {nm}_init_ok')
    spin(f'{nm}_init', 48, 2, '0', 96)
    srd(48, 32, 33, 256*128, FLAG_OFF)
    t = tile_sreg
    if kind == 't':
        e('v_lshrrev_b32 v2, 2, v0')
        e('v_and_b32 v4, 3, v0')
        e(f's_lshr_b32 s14, s{t}, 3')
        e(f's_and_b32 s15, s{t}, 7')
        e('s_lshl_b32 s15, s15, 5')
        e('s_add_u32 s14, s14, s15')
        e('v_lshlrev_b32 v2, 1, v2')
        e('v_lshl_add_u32 v2, v4, 3, v2')
        e('v_add_u32 v2, s14, v2')
        off = 4
    else:
        e('v_lshrrev_b32 v2, 3, v0')
        e('v_and_b32 v4, 7, v0')
        e(f's_lshr_b32 s14, s{t}, 2')
        e('s_lshl_b32 s14, s14, 1')
        e(f's_and_b32 s15, s{t}, 3')
        e('s_lshl_b32 s15, s15, 3')
        e('s_add_u32 s14, s14, s15')
        e('v_lshl_add_u32 v2, v4, 5, v2')
        e('v_add_u32 v2, s14, v2')
        off = 0
    e('v_lshlrev_b32 v2, 7, v2')
    e('s_mov_b64 exec, 0xffff')
    e(f'buffer_atomic_add v3, v2, s[48:51], 0 offen offset:{off} sc1')
    e('s_mov_b64 exec, -1')
    e(f'{nm}_done:')

K = 'standalone__weight_only_int_quip__prompt_kernel'
e(f'.globl {K}')
e('.p2align 8')
e(f'.type {K},@function')
e(f'{K}:')
e('s_cmp_ge_u32 s2, 256')
e('s_cbranch_scc1 L_end')
e('s_load_dwordx16 s[16:31], s[0:1], 0')
e('s_load_dwordx2 s[32:33], s[0:1], 64')
e('v_lshrrev_b32 v1, 6, v0')
e('v_and_b32 v0, 63, v0')
e('v_readfirstlane_b32 s4, v1')
e('s_and_b32 s5, s2, 7')
e('s_lshr_b32 s6, s2, 3')
if PROF:
    e('s_memtime s[64:65]')
    e('s_memrealtime s[66:67]')
e(f's_mov_b32 s{HS+14}, 0')
e('s_cmp_ge_u32 s6, 20')
e('s_cbranch_scc1 L1b')
e(f's_mov_b32 s{HS+14}, 1')

e('s_mul_i32 s7, s6, 52')
e('s_lshr_b32 s7, s7, 8')
e('s_mul_i32 s8, s7, 5')
e('s_sub_u32 s8, s6, s8')
e('s_and_b32 s9, s5, 1')
e('s_mul_i32 s9, s9, 5')
e('s_add_u32 s8, s8, s9')
e('s_lshr_b32 s9, s5, 1')
e('s_lshl_b32 s9, s9, 2')
e('s_add_u32 s7, s7, s9')
e('s_cmp_lt_u32 s4, 4')
e('s_cbranch_scc1 L1a_cons')

if opt('PRP', 0): e(f"s_setprio {opt('PRP', 0)}")
e('s_sub_u32 s11, s4, 4')
e('v_lshrrev_b32 v16, 4, v0')
e('v_and_b32 v17, 15, v0')
e('s_mul_i32 s12, s11, 192')
e('s_mul_i32 s13, s7, 192')
e('v_mov_b32 v31, 5')
for i in range(3):
    e(f'v_add_u32 v18, s12, v0')
    if i: e(f'v_add_u32 v18, {64*i}, v18')
    e('v_mul_u32_u24 v19, 5462, v18')
    e('v_lshrrev_b32 v19, 16, v19')
    e('v_mul_u32_u24 v28, 12, v19')
    e('v_sub_u32 v28, v18, v28')
    e('v_lshrrev_b32 v29, 1, v28')
    e('v_bfe_u32 v30, v19, 3, 1')
    e('v_sub_u32 v29, v29, v30')
    e('v_cmp_gt_i32 vcc, 0, v29')
    e('v_and_b32 v28, 1, v28')
    e('v_mul_u32_u24 v19, 3072, v19')
    e('v_cndmask_b32 v29, v29, v31, vcc')
    e('v_lshl_add_u32 v19, v28, 4, v19')
    e('v_lshl_add_u32 v19, v29, 5, v19')
    e(f'v_add_u32 v{24+i}, s13, v19')
e('s_lshl_b32 s12, s8, 6')
e('s_lshl_b32 s13, s11, 4')
e('s_add_u32 s12, s12, s13')
e('v_add_u32 v18, s12, v16')
e('v_mul_u32_u24 v18, 6144, v18')
e('v_lshl_add_u32 v20, v17, 4, v18')
for j in range(1, 4):
    e(f'v_add_u32 v{20+j}, {j*24576}, v20')
e('s_mul_i32 s12, s11, 3072')
e(f's_add_u32 s12, s12, {VRING}')
e('s_lshl_b32 s35, s11, 11')
e(f's_add_u32 s34, s35, {AR}')
e('s_mul_i32 s15, s8, 196608')
e('s_add_u32 s15, s15, s35')
e('v_lshlrev_b32 v33, 4, v0')
e('s_waitcnt lgkmcnt(0)')
prof_start()
srd(40, 26, 27, 1536*1536*2)
srd(36, 18, 19, 640*1536*4)
QB = 64
def issue_loads(ci):
    e(f's_mov_b32 s14, {ci*196608}')
    for i in range(3):
        e(f's_add_u32 m0, s12, {(ci % RV)*12288 + i*1024}')
        e('s_nop 0')
        e(f'buffer_load_dwordx4 v{24+i}, s[40:43], s14 offen lds')
    if ci < CS:
        for j in range(4):
            r = QB + (ci % NS)*16 + j*4
            e(f'buffer_load_dwordx4 v[{r}:{r+3}], v{20+j}, s[36:39], 0 offen offset:{ci*256}')
    else:
        e(f's_add_u32 s13, s15, {ci*8192}')
        e(f's_add_u32 m0, s34, {(ci % 4)*8192}')
        e('s_nop 0')
        e('buffer_load_dwordx4 v33, s[48:51], s13 offen sc1 lds')
        e('buffer_load_dwordx4 v33, s[48:51], s13 offen offset:1024 sc1 lds')
def nops(ci): return 0 if ci > 23 else (7 if ci < CS else 5)
stamp(1)
issue_loads(0)
srd(48, 32, 33, WQ_BYTES, WQ_OFF)
e('s_lshl_b32 s9, s11, 11')
e(f's_add_u32 s9, s9, {AR}')
e('v_lshrrev_b32 v18, 1, v17')
e('v_lshrrev_b32 v19, 1, v16')
e('v_xor_b32 v18, v18, v19')
e('v_and_b32 v19, 1, v17')
e('v_lshlrev_b32 v19, 3, v19')
e('v_lshl_add_u32 v19, v16, 7, v19')
e('v_add_u32 v19, s9, v19')
for j in range(4):
    e(f'v_xor_b32 v32, {2*j}, v18')
    e(f'v_lshl_add_u32 v{28+j}, v32, 4, v19')
    if j: e(f'v_add_u32 v{28+j}, {j*512}, v{28+j}')
e('v_lshlrev_b32 v27, 4, v17')
for c in range(1, D):
    issue_loads(c)
def const_read(c):
    e(f'ds_read_b128 v[36:39], v27 offset:{CTS + c*256}')
    e(f'ds_read_b128 v[40:43], v27 offset:{CTC + c*256}')
e('s_barrier')
const_read(0)
for c in range(24):
    k = c % NS
    e(f's_waitcnt vmcnt({sum(nops(c+i) for i in range(1, D))})')
    if c + D < 24:
        issue_loads(c + D)
    if c < CS:
        for j in range(4):
            r = QB + k*16 + j*4
            for i in range(4):
                e(f'v_cvt_f32_i32 v{r+i}, v{r+i}')
        e('s_waitcnt lgkmcnt(0)')
        for j in range(4):
            r = QB + k*16 + j*4
            for i in range(4):
                e(f'v_fma_f32 v{r+i}, v{r+i}, v{36+i}, v{40+i}')
            w = 44 + 2*j
            e(f'v_cvt_pk_bf16_f32 v{w}, v{r}, v{r+1}')
            e(f'v_cvt_pk_bf16_f32 v{w+1}, v{r+2}, v{r+3}')
            e(f'ds_write_b64 v{28+j}, v[{w}:{w+1}] offset:{(c%4)*8192}')
        if c + 1 < CS:
            const_read(c + 1)
            e('s_waitcnt lgkmcnt(2)')
        else:
            e('s_waitcnt lgkmcnt(0)')
    e('s_barrier')
e('s_barrier')
e('s_branch L2_load')

e('L1a_cons:')
if opt('PRC', 0): e(f"s_setprio {opt('PRC', 0)}")
e('s_and_b32 s11, s4, 1')
e('s_lshr_b32 s12, s4, 1')
e('s_lshl_b32 s10, s4, 9')
e('v_lshlrev_b32 v1, 3, v0')
e('v_add_u32 v1, s10, v1')
e('v_and_b32 v16, 15, v0')
e('v_lshrrev_b32 v17, 4, v0')
e('v_lshrrev_b32 v18, 1, v16')
e('v_xor_b32 v18, v17, v18')
e('v_xor_b32 v19, 4, v18')
e('v_lshlrev_b32 v18, 4, v18')
e('v_lshlrev_b32 v19, 4, v19')
e('s_lshl_b32 s13, s11, 12')
e(f's_add_u32 s13, s13, {AR}')
e('v_lshl_add_u32 v20, v16, 7, s13')
e('v_add_u32 v18, v18, v20')
e('v_add_u32 v19, v19, v20')
e('s_waitcnt lgkmcnt(0)')
prof_start()
jc_zero()
srd(48, 20, 21, 3072)
srd(52, 22, 23, 3072)
e('buffer_load_dwordx2 v[2:3], v1, s[48:51], 0 offen')
e('buffer_load_dwordx2 v[4:5], v1, s[52:55], 0 offen')
e('buffer_load_dwordx2 v[6:7], v1, s[48:51], 0 offen offset:2048')
e('buffer_load_dwordx2 v[8:9], v1, s[52:55], 0 offen offset:2048')
srd(44, 32, 33, T2_BYTES, T2_OFF)
e('v_lshlrev_b32 v1, 1, v1')
e('v_lshrrev_b32 v20, 2, v16')
e('v_and_b32 v21, 3, v16')
e('v_lshl_add_u32 v20, v17, 3, v20')
e('v_mul_u32_u24 v20, 192, v20')
e('v_and_b32 v22, 1, v17')
e('v_lshl_add_u32 v20, v22, 5, v20')
e('v_lshl_add_u32 v20, v21, 3, v20')
e('s_mul_i32 s13, s12, 96')
e('v_add_u32 v20, s13, v20')
e('s_mul_i32 s13, s12, 192')
e('v_mul_u32_u24 v22, s13, v22')
e('v_sub_u32 v21, v20, v22')
ACC = 24; FS = 48
for i in range(24):
    e(f'v_mov_b32 v{ACC+i}, 0')
for i in range(40):
    e(f'v_mov_b32 v{FS+40+i}, 0')
for half in range(2):
    s0 = 2 + 4*half; z0 = 4 + 4*half
    e(f's_waitcnt vmcnt({2-2*half})')
    e(f'v_lshlrev_b32 v128, 16, v{s0}')
    e(f'v_and_b32 v129, 0xffff0000, v{s0}')
    e(f'v_lshlrev_b32 v130, 16, v{s0+1}')
    e(f'v_and_b32 v131, 0xffff0000, v{s0+1}')
    e(f'v_lshlrev_b32 v132, 16, v{z0}')
    e(f'v_and_b32 v133, 0xffff0000, v{z0}')
    e(f'v_lshlrev_b32 v134, 16, v{z0+1}')
    e(f'v_and_b32 v135, 0xffff0000, v{z0+1}')
    for i in range(4):
        e(f'v_mul_f32 v{132+i}, -v{132+i}, v{128+i}')
    e(f'ds_write_b128 v1, v[128:131] offset:{CTS + half*4096}')
    e(f'ds_write_b128 v1, v[132:135] offset:{CTC + half*4096}')
    if half == 0: e('s_nop 1')
e('s_mov_b32 s14, 0')
e('s_mov_b32 s15, 0')
e('s_waitcnt lgkmcnt(0)')
e('s_barrier')
stamp(1)
def c1a_reads(u4):
    out = []
    u = u4 & 1
    base = FS + 40*u
    for k32 in range(2):
        va = 18 + k32
        for et2 in range(2):
            r = base + (k32*2+et2)*4
            out.append(f'ds_read_b128 v[{r}:{r+3}], v{va} offset:{u4*8192 + et2*2048}')
        for pp in range(3):
            r = base + 16 + (k32*3+pp)*4
            vb = 23 if pp == 2 else 22
            for t in range(2):
                out.append(f'ds_read_b64_tr_b16 v[{r+2*t}:{r+2*t+1}], v{vb} offset:{VRING + k32*6144 + t*768 + pp*32}')
    return out
def c1a_mfmas(u):
    out = []
    base = FS + 40*u
    for k32 in range(2):
        for pp in range(3):
            for et2 in range(2):
                a = base + (k32*2+et2)*4
                b = base + 16 + (k32*3+pp)*4
                c = ACC + (et2*3+pp)*4
                out.append(f'v_mfma_f32_16x16x32_bf16 v[{c}:{c+3}], v[{a}:{a+3}], v[{b}:{b+3}], v[{c}:{c+3}]')
    return out
e('L1a_cloop:')
for u in range(4):
    e('s_barrier')
    stamp('s70')
    e('v_add_u32 v22, s14, v20')
    e('v_add_u32 v23, s14, v21')
    e('s_add_u32 s14, s14, 12288')
    e(f's_cmp_ge_u32 s14, {RV*12288}')
    e('s_cselect_b32 s14, 0, s14')
    interleave(c1a_reads(u), c1a_mfmas(1-(u&1)), 2)
    if u == 0:
        e('s_sub_u32 s13, s15, 2')
        e('s_lshl_b32 s61, s4, 4')
        e('s_or_b32 s13, s13, s61')
        e('s_cmp_gt_u32 s13, 1')
        e('s_cbranch_scc1 L1a_nchk')
        if PROF:
            e('s_lshl_b32 s71, s13, 1')
            e('s_add_u32 s71, s71, 28')
            stamp('s71')
        e('s_waitcnt vmcnt(0)')
        e('v_readfirstlane_b32 s62, v6')
        e('s_lshl_b32 s63, s13, 2')
        e('s_add_u32 s63, s63, 4')
        e('s_cmp_ge_u32 s62, s63')
        e('s_cbranch_scc1 L1a_nchk')
        srd(56, 30, 31, 256)
        e('s_lshl_b32 s13, s13, 6')
        e('s_lshl_b32 s60, s8, 2')
        e('s_add_u32 s60, s60, s13')
        e('s_add_u32 s60, s60, 64')
        e('v_mov_b32 v10, 0')
        spin('L1a_chk', 56, 10, 's60', 's63', '', 62, 13, 6)
        stamp('s71')
        e('L1a_nchk:')
    if u == 0:
        e('s_sub_u32 s13, s15, 1')
        e('s_or_b32 s13, s13, s4')
        e('s_cmp_lg_u32 s13, 0')
        e('s_cbranch_scc1 L1a_nip')
        srd(56, 30, 31, 256)
        e('v_mov_b32 v10, 0')
        e('buffer_load_dword v7, v10, s[56:59], 0 offen sc1')
        e('L1a_nip:')
    if u == 3:
        e('s_sub_u32 s13, s15, 1')
        e('s_lshl_b32 s61, s4, 4')
        e('s_or_b32 s13, s13, s61')
        e('s_cmp_gt_u32 s13, 1')
        e('s_cbranch_scc1 L1a_nprb')
        e('v_mov_b32 v10, 0')
        e('s_cmp_lg_u32 s13, 0')
        e('s_cbranch_scc1 L1a_iok')
        e('s_waitcnt vmcnt(0)')
        e('v_readfirstlane_b32 s62, v7')
        e('s_cmp_ge_u32 s62, 96')
        e('s_cbranch_scc1 L1a_iok')
        srd(56, 30, 31, 256)
        spin('L1a_ichk', 56, 10, '0', 96, '', 62, 63, 7)
        e('L1a_iok:')
        srd(56, 30, 31, 256)
        e('s_lshl_b32 s13, s13, 6')
        e('s_lshl_b32 s61, s8, 2')
        e('s_add_u32 s61, s61, s13')
        e('s_add_u32 s61, s61, 64')
        e('buffer_load_dword v6, v10, s[56:59], s61 offen sc1')
        e('L1a_nprb:')
    e('s_waitcnt lgkmcnt(0)')
e('s_add_u32 s15, s15, 1')
e('s_cmp_lt_u32 s15, 6')
e('s_cbranch_scc1 L1a_cloop')
init_probe()
e('s_barrier')
for m in c1a_mfmas(1): e(m)
e('v_and_b32 v22, 1, v17')
e('v_lshrrev_b32 v23, 1, v17')
e('v_lshlrev_b32 v1, 4, v16')
e('v_lshl_add_u32 v1, v22, 9, v1')
e('v_lshl_add_u32 v1, v23, 10, v1')
e('s_mul_i32 s13, s7, 60')
e('s_lshl_b32 s14, s8, 1')
e('s_add_u32 s13, s13, s14')
e('s_add_u32 s13, s13, s11')
e('s_lshl_b32 s13, s13, 11')
for pp in range(3):
    e(f's_mul_i32 s14, s12, 3')
    e(f's_add_u32 s14, s14, {pp}')
    e('s_lshr_b32 s15, s14, 1')
    e('s_mul_i32 s15, s15, 40960')
    e('s_and_b32 s14, s14, 1')
    e('s_lshl_b32 s14, s14, 8')
    e('s_add_u32 s14, s14, s15')
    e('s_add_u32 s14, s14, s13')
    if pp == 0: e('s_nop 3')
    r = FS + pp*4
    for et2 in range(2):
        c = ACC + (et2*3+pp)*4
        e(f'v_cvt_pk_bf16_f32 v{r+2*et2}, v{c}, v{c+1}')
        e(f'v_cvt_pk_bf16_f32 v{r+2*et2+1}, v{c+2}, v{c+3}')
    e('s_nop 1')
    e(f'v_permlane32_swap_b32 v{r}, v{r+2}')
    e(f'v_permlane32_swap_b32 v{r+1}, v{r+3}')
    e(f'buffer_store_dwordx4 v[{r}:{r+3}], v1, s[44:47], s14 offen sc1')
signal('t', 7)
e('s_branch L2_comp')

pfl = [0]
def pf_piece(nreg, c0expr):
    k = pfl[0]; pfl[0] += 1
    e(f's_mul_i32 s48, s{nreg}, 2979')
    e('s_lshr_b32 s48, s48, 20')
    e('s_mul_i32 s49, s48, 352')
    e(f's_sub_u32 s49, s{nreg}, s49')
    e(f's_add_u32 s48, s48, {c0expr}')
    e('s_cmp_ge_u32 s49, 160')
    e(f's_cbranch_scc1 L_pf_v{k}')
    e('s_mul_i32 s49, s49, 24576')
    e('s_lshl_b32 s48, s48, 8')
    e('s_add_u32 s48, s48, s49')
    e('buffer_load_dwordx4 v[208:211], v137, s[36:39], s48 offen')
    e(f's_branch L_pf_n{k}')
    e(f'L_pf_v{k}:')
    e('s_sub_u32 s49, s49, 160')
    e('s_mul_i32 s50, s49, 171')
    e('s_lshr_b32 s50, s50, 9')
    e('s_mul_i32 s51, s50, 3')
    e('s_sub_u32 s49, s49, s51')
    e('s_lshl_b32 s48, s48, 6')
    e('s_add_u32 s48, s48, s50')
    e('s_mul_i32 s48, s48, 3072')
    e('s_lshl_b32 s49, s49, 10')
    e('s_add_u32 s48, s48, s49')
    e('buffer_load_dwordx4 v[208:211], v136, s[40:43], s48 offen')
    e(f'L_pf_n{k}:')
PFS = opt('PFS', CS)
e('L1b:')
e('v_lshlrev_b32 v136, 4, v0')
e('v_lshrrev_b32 v137, 4, v0')
e('v_mul_u32_u24 v137, 6144, v137')
e('v_and_b32 v138, 15, v0')
e('v_lshl_add_u32 v137, v138, 4, v137')
e('s_waitcnt lgkmcnt(0)')
prof_start()
e('s_cmp_lg_u32 s4, 7')
e('s_cbranch_scc1 L1b_nz')
flag_zero()
jc_zero()
e('s_waitcnt vmcnt(0)')
flag_init_done()
e('L1b_nz:')
srd(40, 26, 27, 1536*1536*2)
srd(36, 18, 19, 640*1536*4)
e('s_cmp_lt_u32 s6, 30')
e('s_cbranch_scc1 L1b_pf')
NT = (24-CS)*40
HB = 8
def helper_setup():
    srd(44, 20, 21, 3072)
    srd(48, 22, 23, 3072)
    e('v_lshrrev_b32 v2, 3, v0')
    e('v_and_b32 v3, 7, v0')
    e('v_mul_u32_u24 v4, 6144, v2')
    e('v_lshl_add_u32 v4, v3, 5, v4')
    e('v_add_u32 v5, 49152, v4')
    e('v_lshlrev_b32 v6, 4, v3')
def helper_loads(k, treg):
    e(f's_mul_i32 s15, s{treg}, 1639')
    e('s_lshr_b32 s15, s15, 16')
    e('s_mul_i32 s34, s15, 40')
    e(f's_sub_u32 s34, s{treg}, s34')
    e(f's_add_u32 s15, s15, {CS}')
    e(f's_lshr_b32 s{HS+4+k}, s34, 2')
    e('s_lshl_b32 s34, s34, 4')
    e('s_mul_i32 s35, s34, 6144')
    e('s_lshl_b32 s52, s15, 8')
    e('s_add_u32 s35, s35, s52')
    r = HB + 24*k
    e(f'buffer_load_dwordx4 v[{r}:{r+3}], v4, s[36:39], s35 offen')
    e(f'buffer_load_dwordx4 v[{r+4}:{r+7}], v4, s[36:39], s35 offen offset:16')
    e(f'buffer_load_dwordx4 v[{r+8}:{r+11}], v5, s[36:39], s35 offen')
    e(f'buffer_load_dwordx4 v[{r+12}:{r+15}], v5, s[36:39], s35 offen offset:16')
    e('s_lshl_b32 s52, s15, 7')
    e(f'buffer_load_dwordx4 v[{r+16}:{r+19}], v6, s[44:47], s52 offen')
    e(f'buffer_load_dwordx4 v[{r+20}:{r+23}], v6, s[48:51], s52 offen')
    e(f's_mul_i32 s52, s{HS+4+k}, 24')
    e('s_add_u32 s52, s52, s15')
    e('s_lshl_b32 s52, s52, 13')
    e('s_and_b32 s34, s34, 63')
    e('s_lshl_b32 s34, s34, 7')
    e(f's_add_u32 s{HS+k}, s52, s34')
    e(f's_cmp_lt_u32 s15, {CS+4}')
    e(f's_cselect_b32 s{HS+8+k}, 64, 128')
def helper_setup2():
    e('v_lshrrev_b32 v7, 4, v0')
    e('v_xor_b32 v7, v3, v7')
    e('v_xor_b32 v3, 4, v7')
    e('v_lshlrev_b32 v2, 7, v2')
    e('v_lshl_add_u32 v3, v3, 4, v2')
    e('v_add_u32 v3, 1024, v3')
    e('v_lshl_add_u32 v2, v7, 4, v2')
    srd(44, 32, 33, WQ_BYTES, WQ_OFF)
    e('v_lshlrev_b32 v128, 2, v0')
    e('v_mov_b32 v129, 1')
def helper_task(k):
    r = HB + 24*k
    for i in range(4):
        e(f'v_lshlrev_b32 v{112+2*i}, 16, v{r+16+i}')
        e(f'v_and_b32 v{113+2*i}, 0xffff0000, v{r+16+i}')
        e(f'v_lshlrev_b32 v{120+2*i}, 16, v{r+20+i}')
        e(f'v_and_b32 v{121+2*i}, 0xffff0000, v{r+20+i}')
    for i in range(8):
        e(f'v_mul_f32 v{120+i}, -v{120+i}, v{112+i}')
    for j in range(2):
        q = r + 8*j
        for i in range(8):
            e(f'v_cvt_f32_i32 v{q+i}, v{q+i}')
        for i in range(8):
            e(f'v_fma_f32 v{q+i}, v{q+i}, v{112+i}, v{120+i}')
        for i in range(4):
            e(f'v_cvt_pk_bf16_f32 v{q+i}, v{q+2*i}, v{q+2*i+1}')
        e(f'buffer_store_dwordx4 v[{q}:{q+3}], v{2+j}, s[44:47], s{HS+k} offen sc1')
def helper_signal(k, nl, va, vd):
    e(f's_lshl_b32 s14, s{HS+4+k}, 2')
    e(f's_add_u32 s14, s14, s{HS+8+k}')
    e(f's_mov_b64 exec, {(1 << nl) - 1}')
    e(f'buffer_atomic_add v{vd}, v{va}, s[48:51], s14 offen sc1')
    e('s_mov_b64 exec, -1')

e('s_lshl_b32 s13, s5, 1')
e('s_add_u32 s13, s13, s6')
e('s_sub_u32 s13, s13, 30')
e('s_lshl_b32 s13, s13, 3')
e('s_add_u32 s13, s13, s4')
helper_setup()
e('s_mov_b32 s53, s13')
helper_loads(0, 53)
e('s_add_u32 s54, s13, 128')
e('s_cmp_ge_u32 s54, 160')
e('s_cselect_b32 s54, s53, s54')
helper_loads(1, 54)
NVP = (24-CS)*192//128
helper_setup2()
stamp(20)
e('s_waitcnt vmcnt(6)')
stamp(21)
helper_task(0)
e('s_waitcnt vmcnt(2)')
helper_task(1)
srd(48, 30, 31, 256)
e('s_waitcnt vmcnt(0)')
e('s_barrier')
stamp(22)
e('s_cmp_lg_u32 s4, 0')
e('s_cbranch_scc1 L_h_s1')
helper_signal(0, 2, 128, 129)
e('s_cmp_eq_u32 s54, s53')
e('s_cbranch_scc1 L_h_s1')
helper_signal(1, 2, 128, 129)
e('L_h_s1:')
if PFS < CS and opt('PFI', 1):
    e('s_mov_b32 s55, s13')
    e('L_pfi_loop:')
    pf_piece(55, PFS)
    e('s_add_u32 s55, s55, 128')
    e(f's_cmp_lt_u32 s55, {(CS-PFS)*352}')
    e('s_cbranch_scc1 L_pfi_loop')
e('s_lshl_b32 s14, s13, 10')
e(f's_add_u32 s14, s14, {CS*196608}')
for i in range(NVP):
    e('buffer_load_dwordx4 v[208:211], v136, s[40:43], s14 offen')
    e('s_add_u32 s14, s14, 131072')
e('s_barrier')
e('s_cmp_lt_u32 s4, 4')
e('s_cbranch_scc1 L2_comp')
e('s_branch L2_load')

e('L1b_pf:')
e('s_cmp_ge_u32 s4, 4')
e('s_cbranch_scc1 L1b_go')
e('s_mul_i32 s13, s5, 10')
e('s_add_u32 s13, s13, s6')
e('s_sub_u32 s13, s13, 20')
e('s_lshl_b32 s13, s13, 2')
e('s_add_u32 s13, s13, s4')
e('s_add_u32 s53, s13, 160')
NR = ((PFS-PFC0)*352+319)//320
PFE = opt('PFE', 3)
for k in range(max(NR, PFE+1)):
    if k == min(PFE, NR):
        srd(44, 20, 21, 3072)
        e('s_mov_b32 s55, s13')
        helper_setup()
        helper_loads(0, 53)
        e('s_mov_b32 s13, s55')
    if k < NR:
        pf_piece(13, PFC0)
        e('s_add_u32 s13, s13, 320')
helper_setup2()
stamp(20)
e(f's_waitcnt vmcnt({max(NR - PFE, 0)})')
stamp(21)
helper_task(0)
e('L1b_go:')
e('s_sub_u32 s9, s6, 20')
e('s_and_b32 s7, s9, 1')
e('s_lshl_b32 s8, s5, 1')
e('s_add_u32 s7, s7, s8')
e('s_lshr_b32 s8, s9, 1')
e('s_cmp_lt_u32 s4, 4')
e('s_cbranch_scc1 L1b_cons')
e('s_sub_u32 s11, s4, 4')
e('v_lshrrev_b32 v16, 3, v0')
e('v_and_b32 v17, 7, v0')
e('v_lshrrev_b32 v18, 4, v0')
e('s_lshl_b32 s12, s7, 7')
e('s_lshl_b32 s13, s11, 5')
e('s_add_u32 s12, s12, s13')
e('v_add_u32 v16, s12, v16')
e('v_mul_u32_u24 v16, 1280, v16')
e('v_xor_b32 v19, v17, v18')
e('v_xor_b32 v18, 4, v19')
e('v_lshl_add_u32 v20, v19, 4, v16')
e('v_lshl_add_u32 v21, v18, 4, v16')
e('v_add_u32 v21, 10240, v21')
e('v_add_u32 v22, 20480, v20')
e('v_add_u32 v23, 20480, v21')
e('v_lshrrev_b32 v16, 4, v0')
e('v_bfe_u32 v17, v0, 2, 2')
e('v_xor_b32 v17, v17, v16')
e('v_and_b32 v18, 3, v0')
e('s_lshl_b32 s12, s11, 4')
e('v_add_u32 v16, s12, v16')
e('v_mul_u32_u24 v16, 1280, v16')
e('v_lshl_add_u32 v16, v17, 6, v16')
e('v_lshl_add_u32 v16, v18, 4, v16')
e('s_lshl_b32 s12, s8, 8')
e('v_add_u32 v24, s12, v16')
for i in range(1, 4):
    e(f'v_add_u32 v{24+i}, {i*5120}, v24')
e('s_lshl_b32 s12, s11, 12')
e('s_mov_b32 s13, 0')
e('s_mov_b32 s14, 0')
e('s_mov_b32 s15, 0')
srd(36, 16, 17, 2048*640*2)
srd(40, 24, 25, 640*640*2)
def issue1b():
    e('s_add_u32 s34, s15, s12')
    for i in range(4):
        e(f's_add_u32 m0, s34, {i*1024}')
        e('s_nop 0')
        e(f'buffer_load_dwordx4 v{20+i}, s[36:39], s13 offen lds')
    for i in range(4):
        e(f's_add_u32 m0, s34, {16384+i*1024}')
        e('s_nop 0')
        e(f'buffer_load_dwordx4 v{24+i}, s[40:43], s14 offen lds')
    e('s_add_u32 s13, s13, 128')
    e('s_add_u32 s14, s14, 81920')
    e('s_add_u32 s15, s15, 32768')
    e(f's_and_b32 s15, s15, {R1B*32768-1}')
stamp(1)
for c in range(D1B):
    issue1b()
e('s_mov_b32 s35, 0')
e('L1b_ploop:')
issue1b()
e(f's_waitcnt vmcnt({8*D1B})')
e('s_barrier')
e('s_add_u32 s35, s35, 1')
e(f's_cmp_lt_u32 s35, {10-D1B}')
e('s_cbranch_scc1 L1b_ploop')
for k in range(D1B):
    e(f's_waitcnt vmcnt({8*(D1B-1-k)})')
    e('s_barrier')
e('s_barrier')
e('s_branch L2_load')

e('L1b_cons:')
e('s_and_b32 s11, s4, 1')
e('s_lshr_b32 s12, s4, 1')
e('v_and_b32 v16, 31, v0')
e('v_lshrrev_b32 v17, 5, v0')
e('v_bfe_u32 v18, v16, 1, 3')
e('v_xor_b32 v18, v17, v18')
e('s_lshl_b32 s13, s11, 13')
e('v_lshl_add_u32 v19, v16, 7, s13')
for k in range(4):
    e(f'v_xor_b32 v14, {2*k}, v18')
    e(f'v_lshl_add_u32 v{2+k}, v14, 4, v19')
e('v_bfe_u32 v18, v0, 2, 2')
e('v_and_b32 v19, 3, v0')
e('v_bfe_u32 v14, v0, 4, 1')
e('v_lshl_add_u32 v15, v17, 3, v18')
e('v_lshlrev_b32 v15, 8, v15')
e('v_lshl_add_u32 v15, v14, 5, v15')
e('v_lshl_add_u32 v15, v19, 3, v15')
e('v_add_u32 v15, 16384, v15')
e('s_lshl_b32 s13, s12, 1')
for et2 in range(2):
    e(f's_add_u32 s14, s13, {et2}')
    e('v_xor_b32 v14, s14, v18')
    e(f'v_lshl_add_u32 v{6+et2}, v14, 6, v15')
ACB = 16; FB = 80
for i in range(64):
    e(f'v_mov_b32 v{ACB+i}, 0')
for i in range(64):
    e(f'v_mov_b32 v{FB+64+i}, 0')
srd(44, 32, 33, XR_BYTES, XR_OFF)
e('s_mov_b32 s14, 0')
e('s_mov_b32 s15, 0')
def c1b_reads(u):
    out = []
    for k in range(4):
        b = FB + 64*u + k*16
        for mt2 in range(2):
            out.append(f'ds_read_b128 v[{b+mt2*4}:{b+mt2*4+3}], v{8+k} offset:{mt2*4096}')
        for et2 in range(2):
            for t in range(2):
                r = b + 8 + et2*4 + 2*t
                out.append(f'ds_read_b64_tr_b16 v[{r}:{r+1}], v{12+et2} offset:{k*4096 + t*1024}')
    return out
def c1b_mfmas(u):
    out = []
    for k in range(4):
        b = FB + 64*u + k*16
        for et2 in range(2):
            for mt2 in range(2):
                c = ACB + (et2*2+mt2)*16
                out.append(f'v_mfma_f32_32x32x16_bf16 v[{c}:{c+15}], v[{b+8+et2*4}:{b+8+et2*4+3}], v[{b+mt2*4}:{b+mt2*4+3}], v[{c}:{c+15}]')
    return out
e('L1b_cloop:')
for u in range(2):
    e('s_barrier')
    stamp('s70')
    for k in range(4):
        e(f'v_add_u32 v{8+k}, s14, v{2+k}')
    for et2 in range(2):
        e(f'v_add_u32 v{12+et2}, s14, v{6+et2}')
    e('s_add_u32 s14, s14, 32768')
    e(f's_and_b32 s14, s14, {R1B*32768-1}')
    interleave(c1b_reads(u), c1b_mfmas(1-u), 2)
    if u == 0:
        e('s_waitcnt vmcnt(0)')
    else:
        e('s_or_b32 s13, s15, s4')
        e('s_cmp_lg_u32 s13, 0')
        e('s_cbranch_scc1 L1b_nhs')
        e(f's_mov_b32 s{HS+12}, s14')
        e('v_mov_b32 v212, 0')
        e('v_mov_b32 v213, 1')
        srd(48, 30, 31, 256)
        stamp(22)
        helper_signal(0, 1, 212, 213)
        e(f's_mov_b32 s14, s{HS+12}')
        e('L1b_nhs:')
    e('s_waitcnt lgkmcnt(0)')
e('s_add_u32 s15, s15, 1')
e('s_cmp_lt_u32 s15, 5')
e('s_cbranch_scc1 L1b_cloop')
init_probe()
e('s_barrier')
for m in c1b_mfmas(1): e(m)
e('v_lshlrev_b32 v1, 4, v0')
e('s_lshl_b32 s13, s7, 2')
e('s_lshl_b32 s14, s11, 1')
e('s_add_u32 s13, s13, s14')
e('s_mul_i32 s13, s13, 20')
e('s_lshl_b32 s14, s8, 2')
e('s_add_u32 s13, s13, s14')
e('s_lshl_b32 s14, s12, 1')
e('s_add_u32 s13, s13, s14')
e('s_lshl_b32 s13, s13, 11')
e('s_add_u32 s14, s13, 40960')
e('s_nop 3')
for et2 in range(2):
    for mt2 in range(2):
        c = ACB + (et2*2+mt2)*16
        for t in range(2):
            r = FB + ((et2*2+mt2)*2+t)*4
            for d in range(4):
                e(f'v_cvt_pk_bf16_f32 v{r+d}, v{c+8*t+2*d}, v{c+8*t+2*d+1}')
            e(f'buffer_store_dwordx4 v[{r}:{r+3}], v1, s[44:47], s{13+mt2} offen offset:{et2*2048 + t*1024} sc1')
signal('x', 7)

def decode2():
    e('s_lshr_b32 s7, s5, 1')
    e('s_lshl_b32 s7, s7, 2')
    e('s_and_b32 s8, s6, 3')
    e('s_add_u32 s7, s7, s8')
    e('s_and_b32 s8, s5, 1')
    e('s_lshl_b32 s8, s8, 3')
    e('s_lshr_b32 s9, s6, 2')
    e('s_add_u32 s8, s8, s9')
    e('v_lshlrev_b32 v1, 4, v0')
    e('v_mov_b32 v3, 0')
    srd(48, 32, 33, 256*128, FLAG_OFF)
    e('s_lshl_b32 s13, s2, 7')
e('L2_comp:')
if opt('PRP', 0) or opt('PRC', 0): e('s_setprio 0')
stamp(40)
decode2()
e('v_add_u32 v2, 0x10000, v1')
srd(36, 32, 33, XR_BYTES, XR_OFF)
srd(44, 28, 29, 2048*1536*2)
e('s_lshl_b32 s9, s7, 2')
e('s_add_u32 s9, s9, s4')
e('s_mul_i32 s10, s9, 40960')
e('s_cmp_lg_u32 s4, 0')
e('s_cbranch_scc1 L2_xwait')
e(f's_cmp_lg_u32 s{HS+14}, 0')
e('s_cbranch_scc1 L2_iok')
srd(56, 30, 31, 256)
spin('L2_ichk', 56, 3, '0', 96)
e('L2_iok:')
spin('L2_pollx', 48, 3, 's13', 5)
e('L2_xwait:')
e('s_waitcnt vmcnt(0)')
e('s_barrier')
stamp(41)
XB = 8; AC2 = 168; TB = 216; NB = 3
XP = opt('XP', 4)
def xr_loads(c):
    out = []
    for i in range(4):
        r = XB + (4*c+i)*4
        out.append(([f's_add_u32 s14, s10, {c*4096}'] if i == 0 else []) + [f'buffer_load_dwordx4 v[{r}:{r+3}], v1, s[36:39], s14 offen offset:{i*1024} sc1'])
    return out
for c in range(XP):
    for g in xr_loads(c):
        for x in g: e(x)
stamp(42)
issued = XP
pending = []
def rd2(s):
    global issued, pending
    if s % 4 == 0:
        c = s // 4
        for g in pending:
            for x in g: e(x)
        pending = []
        e(f's_waitcnt vmcnt({4*(issued-c-1)})')
        e('s_barrier')
        stamp(43+c)
        if issued < 10:
            pending = xr_loads(issued)
            issued += 1
    for gb in range(3):
        r = TB + ((s % NB)*3 + gb)*4
        off = (gb*40 + s)*1024
        if off < 65536:
            e(f'ds_read_b128 v[{r}:{r+3}], v1 offset:{off}')
        else:
            e(f'ds_read_b128 v[{r}:{r+3}], v2 offset:{off-65536}')
rd2(0); rd2(1)
for s in range(40):
    e(f's_waitcnt lgkmcnt({3 if s < 39 else 0})')
    for gb in range(3):
        r = TB + ((s % NB)*3 + gb)*4
        x = XB + s*4
        a = AC2 + gb*16
        cc = '0' if s == 0 else f'v[{a}:{a+15}]'
        e(f'v_mfma_f32_32x32x16_bf16 v[{a}:{a+15}], v[{r}:{r+3}], v[{x}:{x+3}], {cc}')
        if gb == 0 and s + 2 < 40: rd2(s + 2)
        elif pending:
            for x_ in pending.pop(0): e(x_)
stamp(54)
e('v_and_b32 v3, 31, v0')
e('v_lshrrev_b32 v4, 5, v0')
e('s_lshl_b32 s9, s9, 5')
e('v_add_u32 v3, s9, v3')
e('v_mul_u32_u24 v3, 3072, v3')
e('v_lshl_add_u32 v3, v4, 4, v3')
e('s_mul_i32 s12, s8, 192')
e('s_nop 7')
for gb in range(3):
    a = AC2 + gb*16
    w = 8 + gb*8
    for d in range(8):
        e(f'v_cvt_pk_bf16_f32 v{w+d}, v{a+2*d}, v{a+2*d+1}')
    e('s_nop 1')
    for jp in range(2):
        e(f'v_permlane32_swap_b32 v{w+4*jp}, v{w+4*jp+2}')
        e(f'v_permlane32_swap_b32 v{w+4*jp+1}, v{w+4*jp+3}')
    for jp in range(2):
        e(f'buffer_store_dwordx4 v[{w+4*jp}:{w+4*jp+3}], v3, s[44:47], s12 offen offset:{gb*64 + jp*32}{YSF}')
stamp_flush()
e('s_endpgm')

e('L2_load:')
if opt('PRP', 0) or opt('PRC', 0): e('s_setprio 0')
e('s_cmp_lg_u32 s4, 4')
e('s_cbranch_scc1 L_end')
stamp(40)
decode2()
e('s_mul_i32 s12, s8, 122880')
e(f's_add_u32 s12, s12, {T2_OFF}')
e('s_add_u32 s40, s32, s12')
e('s_addc_u32 s41, s33, 0')
e('s_and_b32 s41, s41, 0xffff')
e('s_mov_b32 s42, 122880')
e('s_mov_b32 s43, 0x00020000')
e('s_barrier')
spin('L2_pollt', 48, 3, 's13', 10, ' offset:4')
stamp(41)
TP = opt('TP', 3)
def t2_loads(c):
    for gb in range(3):
        e(f's_mov_b32 s12, {(gb*40 + 4*c)*1024}')
        e('s_mov_b32 m0, s12')
        e('s_nop 0')
        for k in range(4):
            e(f'buffer_load_dwordx4 v1, s[40:43], s12 offen offset:{k*1024} sc1 lds')
for c in range(TP):
    t2_loads(c)
stamp(42)
for c in range(10):
    e(f's_waitcnt vmcnt({12*(min(10, c+TP)-c-1)})')
    e('s_barrier')
    if c + TP < 10: t2_loads(c + TP)
stamp_flush()
e('L_end:')
e('s_endpgm')

e('.section .rodata,"a"')
e('.p2align 6')
e(f'.amdhsa_kernel {K}')
L.append('  .amdhsa_next_free_vgpr 256')
L.append(f'  .amdhsa_next_free_sgpr {96 if PROF else 80}')
L.append('  .amdhsa_accum_offset 256')
L.append('  .amdhsa_group_segment_fixed_size 0')
L.append('  .amdhsa_float_denorm_mode_32 3')
L.append('  .amdhsa_kernarg_size 72')
L.append('  .amdhsa_user_sgpr_count 2')
L.append('  .amdhsa_user_sgpr_kernarg_segment_ptr 1')
L.append('  .amdhsa_system_sgpr_workgroup_id_x 1')
e('.end_amdhsa_kernel')
open(OUT, 'w').write('\n'.join(L) + '\n')
print('wrote', OUT, len(L), 'lines; LDS', LDS)
```

```python
import sys, os, math
def opt(name, d): return int(os.environ.get(name, str(d)))
D    = opt('D', 2)
PFC0 = opt('PFC0', 1)
PROF = opt('PROF', 0)
SLP  = opt('SLP', 4)
YSF  = ['', ' sc1', ' nt', ' sc0 sc1', ' sc1 nt'][opt('YS', 0)]
OUT  = sys.argv[1] if len(sys.argv) > 1 else 'standalone__weight_only_int_quip__prompt.s'
RV   = D + 2
NS   = D + 1
UNR  = NS * 2 // math.gcd(NS, 2)
PV   = 254
HS   = 76 if PROF else 64

XR_OFF = 0
XR_BYTES = 2048 * 640 * 2
T2_OFF = 0x300000
T2_BYTES = 1536 * 640 * 2

L = []
def e(s=''):
    L.append('    ' + s if s and not s.endswith(':') and not s.startswith('.') and not s.startswith(';') else s)

CTS   = 0
CTC   = 8192
AR    = 16384
VRING = 49152
CS    = opt('CS', 12)
GB    = [CS, CS+3, min(CS+11, 24), 24]
if GB[2] == 24: GB = GB[:3]
WQ_OFF = 0x700000
WQ_BYTES = 10 * 24 * 8192
LDS1A = VRING + RV * 12288
R1B = 4; D1B = 2
LDS1B = R1B * 32768
JC = max(LDS1A, LDS1B, 120 * 1024)
LDS = JC + 128
FLAG_OFF = 0x600000

hdr = open('standalone__weight_only_int_quip__prompt.s.ref').read().split('\n')
for line in hdr:
    if line.startswith('; @launch'): break
    L.append(line)
L.append(f'; @launch grid=(256,1,1) block=(512,1,1) lds={LDS}')
e('.amdgcn_target "amdgcn-amd-amdhsa--gfx950"')
e('.text')

def stamp(idx):
    if not PROF: return
    e('s_memtime s[68:69]')
    if isinstance(idx, str):
        e(f's_mov_b32 m0, {idx}')
        e('s_waitcnt lgkmcnt(0)')
        e(f'v_writelane_b32 v{PV}, s68, m0')
        e(f's_add_u32 {idx}, {idx}, 1')
    else:
        e('s_waitcnt lgkmcnt(0)')
        e(f'v_writelane_b32 v{PV}, s68, {idx}')
def stamp_flush():
    if not PROF: return
    stamp(62)
    e('s_memrealtime s[68:69]')
    e('s_waitcnt lgkmcnt(0)')
    e(f'v_writelane_b32 v{PV}, s68, 63')
    e(f's_add_u32 s72, s32, {0xA00000}')
    e('s_addc_u32 s73, s33, 0')
    e('s_and_b32 s73, s73, 0xffff')
    e('s_mov_b32 s74, 0x100000')
    e('s_mov_b32 s75, 0x00020000')
    e('s_lshl_b32 s68, s2, 11')
    e('s_lshl_b32 s69, s4, 8')
    e('s_add_u32 s68, s68, s69')
    e(f'v_lshlrev_b32 v{PV+1}, 2, v0')
    e(f'buffer_store_dword v{PV}, v{PV+1}, s[72:75], s68 offen')
def prof_start():
    if not PROF: return
    e(f'v_mov_b32 v{PV}, -1')
    e(f'v_writelane_b32 v{PV}, s64, 0')
    e(f'v_writelane_b32 v{PV}, s66, 61')
    e('s_mov_b32 s70, 2')

def srd(d, lo, hi, nbytes, add=0):
    if add:
        e(f's_add_u32 s{d}, s{lo}, {add}')
        e(f's_addc_u32 s{d+1}, s{hi}, 0')
        e(f's_and_b32 s{d+1}, s{d+1}, 0xffff')
    else:
        e(f's_mov_b32 s{d}, s{lo}')
        e(f's_and_b32 s{d+1}, s{hi}, 0xffff')
    e(f's_mov_b32 s{d+2}, {nbytes}')
    e(f's_mov_b32 s{d+3}, 0x00020000')

def interleave(rd, mm, per):
    i = 0
    for m in mm:
        for _ in range(per):
            if i < len(rd): e(rd[i]); i += 1
        e(m)
    while i < len(rd): e(rd[i]); i += 1

def flag_zero():
    srd(56, 32, 33, 256*128, FLAG_OFF)
    e('v_mov_b32 v132, 0')
    e('v_lshlrev_b32 v133, 2, v0')
    e('s_mul_i32 s60, s5, 12')
    e('s_add_u32 s60, s60, s6')
    e('s_sub_u32 s60, s60, 20')
    e('s_lshl_b32 s60, s60, 7')
    e('s_mov_b32 exec_hi, 0')
    for k in range(3):
        e('buffer_store_dword v132, v133, s[56:59], s60 offen sc1')
        e('s_add_u32 s60, s60, 12288')
    e('s_mov_b64 exec, -1')
def jc_zero():
    e('v_mov_b32 v10, 0')
    e(f'v_mov_b32 v11, {JC}')
    e('ds_write_b32 v11, v10')
def flag_init_done():
    srd(56, 30, 31, 256)
    e('v_mov_b32 v132, 0')
    e('v_mov_b32 v133, 1')
    e('s_mov_b64 exec, 1')
    e('buffer_atomic_add v133, v132, s[56:59], 0 offen sc1')
    e('s_mov_b64 exec, -1')

def spin(name, srdreg, voff, soff, target, extra='', ta=14, tb=15, vt=4):
    e(f's_mov_b32 s{tb}, 0')
    e(f'{name}:')
    e(f'buffer_load_dword v{vt}, v{voff}, s[{srdreg}:{srdreg+3}], {soff} offen{extra} sc1')
    e('s_waitcnt vmcnt(0)')
    e(f'v_readfirstlane_b32 s{ta}, v{vt}')
    e(f's_add_u32 s{tb}, s{tb}, 1')
    e(f's_cmp_ge_u32 s{ta}, {target}')
    e(f's_cbranch_scc1 {name}_ok')
    e(f's_sleep {SLP}')
    e(f's_cmp_lt_u32 s{tb}, 0x40000')
    e(f's_cbranch_scc1 {name}')
    e(f'{name}_ok:')

def init_probe():
    srd(48, 30, 31, 256)
    e('v_mov_b32 v2, 0')
    e('buffer_load_dword v5, v2, s[48:51], 0 offen sc1')

def signal(kind, tile_sreg):
    nm = f'Lsig_{kind}'
    e('v_mov_b32 v3, 1')
    e(f'v_mov_b32 v2, {JC}')
    e('s_waitcnt vmcnt(0)')
    e('s_mov_b64 exec, 1')
    e('ds_add_rtn_u32 v4, v2, v3')
    e('s_mov_b64 exec, -1')
    e('s_waitcnt lgkmcnt(0)')
    e('v_readfirstlane_b32 s14, v4')
    e('s_cmp_lg_u32 s14, 3')
    e(f's_cbranch_scc1 {nm}_done')
    e('v_readfirstlane_b32 s14, v5')
    e('v_mov_b32 v2, 0')
    e('s_cmp_ge_u32 s14, 96')
    e(f's_cbranch_scc1 {nm}_init_ok')
    spin(f'{nm}_init', 48, 2, '0', 96)
    srd(48, 32, 33, 256*128, FLAG_OFF)
    t = tile_sreg
    if kind == 't':
        e('v_lshrrev_b32 v2, 2, v0')
        e('v_and_b32 v4, 3, v0')
        e(f's_lshr_b32 s14, s{t}, 3')
        e(f's_and_b32 s15, s{t}, 7')
        e('s_lshl_b32 s15, s15, 5')
        e('s_add_u32 s14, s14, s15')
        e('v_lshlrev_b32 v2, 1, v2')
        e('v_lshl_add_u32 v2, v4, 3, v2')
        e('v_add_u32 v2, s14, v2')
        off = 4
    else:
        e('v_lshrrev_b32 v2, 3, v0')
        e('v_and_b32 v4, 7, v0')
        e(f's_lshr_b32 s14, s{t}, 2')
        e('s_lshl_b32 s14, s14, 1')
        e(f's_and_b32 s15, s{t}, 3')
        e('s_lshl_b32 s15, s15, 3')
        e('s_add_u32 s14, s14, s15')
        e('v_lshl_add_u32 v2, v4, 5, v2')
        e('v_add_u32 v2, s14, v2')
        off = 0
    e('v_lshlrev_b32 v2, 7, v2')
    e('s_mov_b64 exec, 0xffff')
    e(f'buffer_atomic_add v3, v2, s[48:51], 0 offen offset:{off} sc1')
    e('s_mov_b64 exec, -1')
    e(f'{nm}_done:')

K = 'standalone__weight_only_int_quip__prompt_kernel'
e(f'.globl {K}')
e('.p2align 8')
e(f'.type {K},@function')
e(f'{K}:')
e('s_cmp_ge_u32 s2, 256')
e('s_cbranch_scc1 L_end')
e('s_load_dwordx16 s[16:31], s[0:1], 0')
e('s_load_dwordx2 s[32:33], s[0:1], 64')
e('v_lshrrev_b32 v1, 6, v0')
e('v_and_b32 v0, 63, v0')
e('v_readfirstlane_b32 s4, v1')
e('s_and_b32 s5, s2, 7')
e('s_lshr_b32 s6, s2, 3')
if PROF:
    e('s_memtime s[64:65]')
    e('s_memrealtime s[66:67]')
e(f's_mov_b32 s{HS+14}, 0')
e('s_cmp_ge_u32 s6, 20')
e('s_cbranch_scc1 L1b')
e(f's_mov_b32 s{HS+14}, 1')

e('s_mul_i32 s7, s6, 52')
e('s_lshr_b32 s7, s7, 8')
e('s_mul_i32 s8, s7, 5')
e('s_sub_u32 s8, s6, s8')
e('s_and_b32 s9, s5, 1')
e('s_mul_i32 s9, s9, 5')
e('s_add_u32 s8, s8, s9')
e('s_lshr_b32 s9, s5, 1')
e('s_lshl_b32 s9, s9, 2')
e('s_add_u32 s7, s7, s9')
e('s_cmp_lt_u32 s4, 4')
e('s_cbranch_scc1 L1a_cons')

if opt('PRP', 0): e(f"s_setprio {opt('PRP', 0)}")
e('s_sub_u32 s11, s4, 4')
e('v_lshrrev_b32 v16, 4, v0')
e('v_and_b32 v17, 15, v0')
e('s_mul_i32 s12, s11, 192')
e('s_mul_i32 s13, s7, 192')
e('v_mov_b32 v31, 5')
for i in range(3):
    e(f'v_add_u32 v18, s12, v0')
    if i: e(f'v_add_u32 v18, {64*i}, v18')
    e('v_mul_u32_u24 v19, 5462, v18')
    e('v_lshrrev_b32 v19, 16, v19')
    e('v_mul_u32_u24 v28, 12, v19')
    e('v_sub_u32 v28, v18, v28')
    e('v_lshrrev_b32 v29, 1, v28')
    e('v_bfe_u32 v30, v19, 3, 1')
    e('v_sub_u32 v29, v29, v30')
    e('v_cmp_gt_i32 vcc, 0, v29')
    e('v_and_b32 v28, 1, v28')
    e('v_mul_u32_u24 v19, 3072, v19')
    e('v_cndmask_b32 v29, v29, v31, vcc')
    e('v_lshl_add_u32 v19, v28, 4, v19')
    e('v_lshl_add_u32 v19, v29, 5, v19')
    e(f'v_add_u32 v{24+i}, s13, v19')
e('s_lshl_b32 s12, s8, 6')
e('s_lshl_b32 s13, s11, 4')
e('s_add_u32 s12, s12, s13')
e('v_add_u32 v18, s12, v16')
e('v_mul_u32_u24 v18, 6144, v18')
e('v_lshl_add_u32 v20, v17, 4, v18')
for j in range(1, 4):
    e(f'v_add_u32 v{20+j}, {j*24576}, v20')
e('s_mul_i32 s12, s11, 3072')
e(f's_add_u32 s12, s12, {VRING}')
e('s_lshl_b32 s35, s11, 11')
e(f's_add_u32 s34, s35, {AR}')
e('s_mul_i32 s15, s8, 196608')
e('s_add_u32 s15, s15, s35')
e('v_lshlrev_b32 v33, 4, v0')
e('s_waitcnt lgkmcnt(0)')
prof_start()
srd(40, 26, 27, 1536*1536*2)
srd(36, 18, 19, 640*1536*4)
QB = 64
def issue_loads(ci):
    e(f's_mov_b32 s14, {ci*196608}')
    for i in range(3):
        e(f's_add_u32 m0, s12, {(ci % RV)*12288 + i*1024}')
        e('s_nop 0')
        e(f'buffer_load_dwordx4 v{24+i}, s[40:43], s14 offen lds')
    if ci < CS:
        for j in range(4):
            r = QB + (ci % NS)*16 + j*4
            e(f'buffer_load_dwordx4 v[{r}:{r+3}], v{20+j}, s[36:39], 0 offen offset:{ci*256}')
    else:
        e(f's_add_u32 s13, s15, {ci*8192}')
        e(f's_add_u32 m0, s34, {(ci % 4)*8192}')
        e('s_nop 0')
        e('buffer_load_dwordx4 v33, s[48:51], s13 offen sc1 lds')
        e('buffer_load_dwordx4 v33, s[48:51], s13 offen offset:1024 sc1 lds')
def nops(ci): return 0 if ci > 23 else (7 if ci < CS else 5)
stamp(1)
issue_loads(0)
srd(48, 32, 33, WQ_BYTES, WQ_OFF)
e('s_lshl_b32 s9, s11, 11')
e(f's_add_u32 s9, s9, {AR}')
e('v_lshrrev_b32 v18, 1, v17')
e('v_lshrrev_b32 v19, 1, v16')
e('v_xor_b32 v18, v18, v19')
e('v_and_b32 v19, 1, v17')
e('v_lshlrev_b32 v19, 3, v19')
e('v_lshl_add_u32 v19, v16, 7, v19')
e('v_add_u32 v19, s9, v19')
for j in range(4):
    e(f'v_xor_b32 v32, {2*j}, v18')
    e(f'v_lshl_add_u32 v{28+j}, v32, 4, v19')
    if j: e(f'v_add_u32 v{28+j}, {j*512}, v{28+j}')
e('v_lshlrev_b32 v27, 4, v17')
for c in range(1, D):
    issue_loads(c)
def const_read(c):
    e(f'ds_read_b128 v[36:39], v27 offset:{CTS + c*256}')
    e(f'ds_read_b128 v[40:43], v27 offset:{CTC + c*256}')
e('s_barrier')
const_read(0)
for c in range(24):
    k = c % NS
    e(f's_waitcnt vmcnt({sum(nops(c+i) for i in range(1, D))})')
    if c + D < 24:
        issue_loads(c + D)
    if c < CS:
        for j in range(4):
            r = QB + k*16 + j*4
            for i in range(4):
                e(f'v_cvt_f32_i32 v{r+i}, v{r+i}')
        e('s_waitcnt lgkmcnt(0)')
        for j in range(4):
            r = QB + k*16 + j*4
            for i in range(4):
                e(f'v_fma_f32 v{r+i}, v{r+i}, v{36+i}, v{40+i}')
            w = 44 + 2*j
            e(f'v_cvt_pk_bf16_f32 v{w}, v{r}, v{r+1}')
            e(f'v_cvt_pk_bf16_f32 v{w+1}, v{r+2}, v{r+3}')
            e(f'ds_write_b64 v{28+j}, v[{w}:{w+1}] offset:{(c%4)*8192}')
        if c + 1 < CS:
            const_read(c + 1)
            e('s_waitcnt lgkmcnt(2)')
        else:
            e('s_waitcnt lgkmcnt(0)')
    e('s_barrier')
e('s_barrier')
e('s_branch L2_load')

e('L1a_cons:')
if opt('PRC', 0): e(f"s_setprio {opt('PRC', 0)}")
e('s_and_b32 s11, s4, 1')
e('s_lshr_b32 s12, s4, 1')
e('s_lshl_b32 s10, s4, 9')
e('v_lshlrev_b32 v1, 3, v0')
e('v_add_u32 v1, s10, v1')
e('v_and_b32 v16, 15, v0')
e('v_lshrrev_b32 v17, 4, v0')
e('v_lshrrev_b32 v18, 1, v16')
e('v_xor_b32 v18, v17, v18')
e('v_xor_b32 v19, 4, v18')
e('v_lshlrev_b32 v18, 4, v18')
e('v_lshlrev_b32 v19, 4, v19')
e('s_lshl_b32 s13, s11, 12')
e(f's_add_u32 s13, s13, {AR}')
e('v_lshl_add_u32 v20, v16, 7, s13')
e('v_add_u32 v18, v18, v20')
e('v_add_u32 v19, v19, v20')
e('s_waitcnt lgkmcnt(0)')
prof_start()
jc_zero()
srd(48, 20, 21, 3072)
srd(52, 22, 23, 3072)
e('buffer_load_dwordx2 v[2:3], v1, s[48:51], 0 offen')
e('buffer_load_dwordx2 v[4:5], v1, s[52:55], 0 offen')
e('buffer_load_dwordx2 v[6:7], v1, s[48:51], 0 offen offset:2048')
e('buffer_load_dwordx2 v[8:9], v1, s[52:55], 0 offen offset:2048')
srd(44, 32, 33, T2_BYTES, T2_OFF)
e('v_lshlrev_b32 v1, 1, v1')
e('v_lshrrev_b32 v20, 2, v16')
e('v_and_b32 v21, 3, v16')
e('v_lshl_add_u32 v20, v17, 3, v20')
e('v_mul_u32_u24 v20, 192, v20')
e('v_and_b32 v22, 1, v17')
e('v_lshl_add_u32 v20, v22, 5, v20')
e('v_lshl_add_u32 v20, v21, 3, v20')
e('s_mul_i32 s13, s12, 96')
e('v_add_u32 v20, s13, v20')
e('s_mul_i32 s13, s12, 192')
e('v_mul_u32_u24 v22, s13, v22')
e('v_sub_u32 v21, v20, v22')
ACC = 24; FS = 48
for i in range(24):
    e(f'v_mov_b32 v{ACC+i}, 0')
for i in range(40):
    e(f'v_mov_b32 v{FS+40+i}, 0')
for half in range(2):
    s0 = 2 + 4*half; z0 = 4 + 4*half
    e(f's_waitcnt vmcnt({2-2*half})')
    e(f'v_lshlrev_b32 v128, 16, v{s0}')
    e(f'v_and_b32 v129, 0xffff0000, v{s0}')
    e(f'v_lshlrev_b32 v130, 16, v{s0+1}')
    e(f'v_and_b32 v131, 0xffff0000, v{s0+1}')
    e(f'v_lshlrev_b32 v132, 16, v{z0}')
    e(f'v_and_b32 v133, 0xffff0000, v{z0}')
    e(f'v_lshlrev_b32 v134, 16, v{z0+1}')
    e(f'v_and_b32 v135, 0xffff0000, v{z0+1}')
    for i in range(4):
        e(f'v_mul_f32 v{132+i}, -v{132+i}, v{128+i}')
    e(f'ds_write_b128 v1, v[128:131] offset:{CTS + half*4096}')
    e(f'ds_write_b128 v1, v[132:135] offset:{CTC + half*4096}')
    if half == 0: e('s_nop 1')
e('s_mov_b32 s14, 0')
e('s_mov_b32 s15, 0')
e('s_waitcnt lgkmcnt(0)')
e('s_barrier')
stamp(1)
def c1a_reads(u4):
    out = []
    u = u4 & 1
    base = FS + 40*u
    for k32 in range(2):
        va = 18 + k32
        for et2 in range(2):
            r = base + (k32*2+et2)*4
            out.append(f'ds_read_b128 v[{r}:{r+3}], v{va} offset:{u4*8192 + et2*2048}')
        for pp in range(3):
            r = base + 16 + (k32*3+pp)*4
            vb = 23 if pp == 2 else 22
            for t in range(2):
                out.append(f'ds_read_b64_tr_b16 v[{r+2*t}:{r+2*t+1}], v{vb} offset:{VRING + k32*6144 + t*768 + pp*32}')
    return out
def c1a_mfmas(u):
    out = []
    base = FS + 40*u
    for k32 in range(2):
        for pp in range(3):
            for et2 in range(2):
                a = base + (k32*2+et2)*4
                b = base + 16 + (k32*3+pp)*4
                c = ACC + (et2*3+pp)*4
                out.append(f'v_mfma_f32_16x16x32_bf16 v[{c}:{c+3}], v[{a}:{a+3}], v[{b}:{b+3}], v[{c}:{c+3}]')
    return out
e('L1a_cloop:')
for u in range(4):
    e('s_barrier')
    stamp('s70')
    e('v_add_u32 v22, s14, v20')
    e('v_add_u32 v23, s14, v21')
    e('s_add_u32 s14, s14, 12288')
    e(f's_cmp_ge_u32 s14, {RV*12288}')
    e('s_cselect_b32 s14, 0, s14')
    interleave(c1a_reads(u), c1a_mfmas(1-(u&1)), 2)
    if u == 0:
        e('s_xor_b32 s13, s15, 4')
        e('s_or_b32 s13, s13, s4')
        e('s_cmp_lg_u32 s13, 0')
        e('s_cbranch_scc1 L1a_nip')
        srd(56, 30, 31, 256)
        e('v_mov_b32 v10, 0')
        e('buffer_load_dword v7, v10, s[56:59], 0 offen sc1')
        e('L1a_nip:')
    for gi in range(len(GB)-1):
        tgt = GB[gi+1] - GB[gi]
        off = 64*(gi+1)
        if (GB[gi]-5) % 4 == u:
            e(f's_xor_b32 s13, s15, {(GB[gi]-5)//4}')
            e('s_or_b32 s13, s13, s4')
            e('s_cmp_lg_u32 s13, 0')
            e(f's_cbranch_scc1 L1a_nprb{gi}')
            srd(56, 30, 31, 256)
            e('v_mov_b32 v10, 0')
            e('s_lshl_b32 s61, s8, 2')
            e(f'buffer_load_dword v6, v10, s[56:59], s61 offen offset:{off} sc1')
            e(f'L1a_nprb{gi}:')
        if (GB[gi]-4) % 4 == u:
            e(f's_xor_b32 s13, s15, {(GB[gi]-4)//4}')
            e('s_or_b32 s13, s13, s4')
            e('s_cmp_lg_u32 s13, 0')
            e(f's_cbranch_scc1 L1a_nchk{gi}')
            stamp(28+2*gi)
            e('s_waitcnt vmcnt(0)')
            e('v_readfirstlane_b32 s62, v6')
            e(f's_cmp_ge_u32 s62, {tgt}')
            e(f's_cbranch_scc1 L1a_nchk{gi}')
            srd(56, 30, 31, 256)
            e('v_mov_b32 v10, 0')
            e('s_lshl_b32 s61, s8, 2')
            spin(f'L1a_chk{gi}', 56, 10, 's61', tgt, f' offset:{off}', 62, 13, 6)
            stamp(29+2*gi)
            e(f'L1a_nchk{gi}:')
    if u == 3:
        e('s_xor_b32 s13, s15, 4')
        e('s_or_b32 s13, s13, s4')
        e('s_cmp_lg_u32 s13, 0')
        e('s_cbranch_scc1 L1a_iok')
        e('s_waitcnt vmcnt(0)')
        e('v_readfirstlane_b32 s62, v7')
        e('s_cmp_ge_u32 s62, 96')
        e('s_cbranch_scc1 L1a_iok')
        srd(56, 30, 31, 256)
        e('v_mov_b32 v10, 0')
        spin('L1a_ichk', 56, 10, '0', 96, '', 62, 63, 7)
        e('L1a_iok:')
    e('s_waitcnt lgkmcnt(0)')
e('s_add_u32 s15, s15, 1')
e('s_cmp_lt_u32 s15, 6')
e('s_cbranch_scc1 L1a_cloop')
init_probe()
e('s_barrier')
for m in c1a_mfmas(1): e(m)
e('v_and_b32 v22, 1, v17')
e('v_lshrrev_b32 v23, 1, v17')
e('v_lshlrev_b32 v1, 4, v16')
e('v_lshl_add_u32 v1, v22, 9, v1')
e('v_lshl_add_u32 v1, v23, 10, v1')
e('s_mul_i32 s13, s7, 60')
e('s_lshl_b32 s14, s8, 1')
e('s_add_u32 s13, s13, s14')
e('s_add_u32 s13, s13, s11')
e('s_lshl_b32 s13, s13, 11')
for pp in range(3):
    e(f's_mul_i32 s14, s12, 3')
    e(f's_add_u32 s14, s14, {pp}')
    e('s_lshr_b32 s15, s14, 1')
    e('s_mul_i32 s15, s15, 40960')
    e('s_and_b32 s14, s14, 1')
    e('s_lshl_b32 s14, s14, 8')
    e('s_add_u32 s14, s14, s15')
    e('s_add_u32 s14, s14, s13')
    if pp == 0: e('s_nop 3')
    r = FS + pp*4
    for et2 in range(2):
        c = ACC + (et2*3+pp)*4
        e(f'v_cvt_pk_bf16_f32 v{r+2*et2}, v{c}, v{c+1}')
        e(f'v_cvt_pk_bf16_f32 v{r+2*et2+1}, v{c+2}, v{c+3}')
    e('s_nop 1')
    e(f'v_permlane32_swap_b32 v{r}, v{r+2}')
    e(f'v_permlane32_swap_b32 v{r+1}, v{r+3}')
    e(f'buffer_store_dwordx4 v[{r}:{r+3}], v1, s[44:47], s14 offen sc1')
signal('t', 7)
e('s_branch L2_comp')

pfl = [0]
def pf_piece(nreg, c0expr):
    k = pfl[0]; pfl[0] += 1
    e(f's_mul_i32 s48, s{nreg}, 2979')
    e('s_lshr_b32 s48, s48, 20')
    e('s_mul_i32 s49, s48, 352')
    e(f's_sub_u32 s49, s{nreg}, s49')
    e(f's_add_u32 s48, s48, {c0expr}')
    e('s_cmp_ge_u32 s49, 160')
    e(f's_cbranch_scc1 L_pf_v{k}')
    e('s_mul_i32 s49, s49, 24576')
    e('s_lshl_b32 s48, s48, 8')
    e('s_add_u32 s48, s48, s49')
    e('buffer_load_dwordx4 v[208:211], v137, s[36:39], s48 offen')
    e(f's_branch L_pf_n{k}')
    e(f'L_pf_v{k}:')
    e('s_sub_u32 s49, s49, 160')
    e('s_mul_i32 s50, s49, 171')
    e('s_lshr_b32 s50, s50, 9')
    e('s_mul_i32 s51, s50, 3')
    e('s_sub_u32 s49, s49, s51')
    e('s_lshl_b32 s48, s48, 6')
    e('s_add_u32 s48, s48, s50')
    e('s_mul_i32 s48, s48, 3072')
    e('s_lshl_b32 s49, s49, 10')
    e('s_add_u32 s48, s48, s49')
    e('buffer_load_dwordx4 v[208:211], v136, s[40:43], s48 offen')
    e(f'L_pf_n{k}:')
PFS = opt('PFS', CS)
e('L1b:')
e('v_lshlrev_b32 v136, 4, v0')
e('v_lshrrev_b32 v137, 4, v0')
e('v_mul_u32_u24 v137, 6144, v137')
e('v_and_b32 v138, 15, v0')
e('v_lshl_add_u32 v137, v138, 4, v137')
e('s_waitcnt lgkmcnt(0)')
prof_start()
e('s_cmp_lg_u32 s4, 7')
e('s_cbranch_scc1 L1b_nz')
flag_zero()
jc_zero()
e('s_waitcnt vmcnt(0)')
flag_init_done()
e('L1b_nz:')
srd(40, 26, 27, 1536*1536*2)
srd(36, 18, 19, 640*1536*4)
e('s_cmp_lt_u32 s6, 30')
e('s_cbranch_scc1 L1b_pf')
NT = (24-CS)*40
assert NT <= 576
HB = 8
def helper_setup():
    srd(44, 20, 21, 3072)
    srd(48, 22, 23, 3072)
    e('v_lshrrev_b32 v2, 3, v0')
    e('v_and_b32 v3, 7, v0')
    e('v_mul_u32_u24 v4, 6144, v2')
    e('v_lshl_add_u32 v4, v3, 5, v4')
    e('v_add_u32 v5, 49152, v4')
    e('v_lshlrev_b32 v6, 4, v3')
def helper_loads(k, treg):
    e(f's_mul_i32 s15, s{treg}, 1639')
    e('s_lshr_b32 s15, s15, 16')
    e('s_mul_i32 s34, s15, 40')
    e(f's_sub_u32 s34, s{treg}, s34')
    e(f's_add_u32 s15, s15, {CS}')
    e(f's_lshr_b32 s{HS+4+k}, s34, 2')
    e('s_lshl_b32 s34, s34, 4')
    e('s_mul_i32 s35, s34, 6144')
    e('s_lshl_b32 s52, s15, 8')
    e('s_add_u32 s35, s35, s52')
    r = HB + 24*k
    e(f'buffer_load_dwordx4 v[{r}:{r+3}], v4, s[36:39], s35 offen')
    e(f'buffer_load_dwordx4 v[{r+4}:{r+7}], v4, s[36:39], s35 offen offset:16')
    e(f'buffer_load_dwordx4 v[{r+8}:{r+11}], v5, s[36:39], s35 offen')
    e(f'buffer_load_dwordx4 v[{r+12}:{r+15}], v5, s[36:39], s35 offen offset:16')
    e('s_lshl_b32 s52, s15, 7')
    e(f'buffer_load_dwordx4 v[{r+16}:{r+19}], v6, s[44:47], s52 offen')
    e(f'buffer_load_dwordx4 v[{r+20}:{r+23}], v6, s[48:51], s52 offen')
    e(f's_mul_i32 s52, s{HS+4+k}, 24')
    e('s_add_u32 s52, s52, s15')
    e('s_lshl_b32 s52, s52, 13')
    e('s_and_b32 s34, s34, 63')
    e('s_lshl_b32 s34, s34, 7')
    e(f's_add_u32 s{HS+k}, s52, s34')
    e(f's_cmp_lt_u32 s15, {GB[1]}')
    e(f's_cselect_b32 s{HS+8+k}, 64, 128')
    if len(GB) > 3:
        e(f's_cmp_lt_u32 s15, {GB[2]}')
        e(f's_cselect_b32 s{HS+8+k}, s{HS+8+k}, 192')
def helper_setup2():
    e('v_lshrrev_b32 v7, 4, v0')
    e('v_xor_b32 v7, v3, v7')
    e('v_xor_b32 v3, 4, v7')
    e('v_lshlrev_b32 v2, 7, v2')
    e('v_lshl_add_u32 v3, v3, 4, v2')
    e('v_add_u32 v3, 1024, v3')
    e('v_lshl_add_u32 v2, v7, 4, v2')
    srd(44, 32, 33, WQ_BYTES, WQ_OFF)
    e('v_lshlrev_b32 v128, 2, v0')
    e('v_mov_b32 v129, 1')
def helper_task(k):
    r = HB + 24*k
    for i in range(4):
        e(f'v_lshlrev_b32 v{112+2*i}, 16, v{r+16+i}')
        e(f'v_and_b32 v{113+2*i}, 0xffff0000, v{r+16+i}')
        e(f'v_lshlrev_b32 v{120+2*i}, 16, v{r+20+i}')
        e(f'v_and_b32 v{121+2*i}, 0xffff0000, v{r+20+i}')
    for i in range(8):
        e(f'v_mul_f32 v{120+i}, -v{120+i}, v{112+i}')
    for j in range(2):
        q = r + 8*j
        for i in range(8):
            e(f'v_cvt_f32_i32 v{q+i}, v{q+i}')
        for i in range(8):
            e(f'v_fma_f32 v{q+i}, v{q+i}, v{112+i}, v{120+i}')
        for i in range(4):
            e(f'v_cvt_pk_bf16_f32 v{q+i}, v{q+2*i}, v{q+2*i+1}')
        e(f'buffer_store_dwordx4 v[{q}:{q+3}], v{2+j}, s[44:47], s{HS+k} offen sc1')
def helper_signal(k, nl, va, vd):
    e(f's_lshl_b32 s14, s{HS+4+k}, 2')
    e(f's_add_u32 s14, s14, s{HS+8+k}')
    e(f's_mov_b64 exec, {(1 << nl) - 1}')
    e(f'buffer_atomic_add v{vd}, v{va}, s[48:51], s14 offen sc1')
    e('s_mov_b64 exec, -1')

e('s_lshl_b32 s13, s5, 1')
e('s_add_u32 s13, s13, s6')
e('s_sub_u32 s13, s13, 30')
e('s_lshl_b32 s13, s13, 3')
e('s_add_u32 s13, s13, s4')
helper_setup()
e('s_mov_b32 s53, s13')
helper_loads(0, 53)
e('s_add_u32 s54, s13, 448')
e(f's_cmp_ge_u32 s54, {NT}')
e('s_cselect_b32 s54, s53, s54')
helper_loads(1, 54)
NVP = (24-CS)*192//128
helper_setup2()
stamp(20)
e('s_waitcnt vmcnt(6)')
stamp(21)
helper_task(0)
e('s_waitcnt vmcnt(2)')
helper_task(1)
srd(48, 30, 31, 256)
e('s_waitcnt vmcnt(0)')
e('s_barrier')
stamp(22)
e('s_cmp_lg_u32 s4, 0')
e('s_cbranch_scc1 L_h_s1')
helper_signal(0, 2, 128, 129)
e('s_cmp_eq_u32 s54, s53')
e('s_cbranch_scc1 L_h_s1')
helper_signal(1, 2, 128, 129)
e('L_h_s1:')
if PFS < CS and opt('PFI', 1):
    e('s_mov_b32 s55, s13')
    e('L_pfi_loop:')
    pf_piece(55, PFS)
    e('s_add_u32 s55, s55, 128')
    e(f's_cmp_lt_u32 s55, {(CS-PFS)*352}')
    e('s_cbranch_scc1 L_pfi_loop')
e('s_lshl_b32 s14, s13, 10')
e(f's_add_u32 s14, s14, {CS*196608}')
for i in range(NVP if opt('PFV', 1) else 0):
    e('buffer_load_dwordx4 v[208:211], v136, s[40:43], s14 offen')
    e('s_add_u32 s14, s14, 131072')
e('s_barrier')
e('s_cmp_lt_u32 s4, 4')
e('s_cbranch_scc1 L2_comp')
e('s_branch L2_load')

e('L1b_pf:')
e('s_cmp_ge_u32 s4, 4')
e('s_cbranch_scc1 L1b_go')
e('s_mul_i32 s13, s5, 10')
e('s_add_u32 s13, s13, s6')
e('s_sub_u32 s13, s13, 20')
e('s_lshl_b32 s13, s13, 2')
e('s_add_u32 s13, s13, s4')
e('s_add_u32 s53, s13, 128')
NR = ((PFS-PFC0)*352+319)//320
PFE = opt('PFE', 3)
for k in range(max(NR, PFE+1)):
    if k == min(PFE, NR):
        srd(44, 20, 21, 3072)
        e('s_mov_b32 s55, s13')
        helper_setup()
        helper_loads(0, 53)
        e('s_mov_b32 s13, s55')
    if k < NR:
        pf_piece(13, PFC0)
        e('s_add_u32 s13, s13, 320')
helper_setup2()
stamp(20)
e(f's_waitcnt vmcnt({max(NR - PFE, 0)})')
stamp(21)
helper_task(0)
e('L1b_go:')
e('s_sub_u32 s9, s6, 20')
e('s_and_b32 s7, s9, 1')
e('s_lshl_b32 s8, s5, 1')
e('s_add_u32 s7, s7, s8')
e('s_lshr_b32 s8, s9, 1')
e('s_cmp_lt_u32 s4, 4')
e('s_cbranch_scc1 L1b_cons')
e('s_sub_u32 s11, s4, 4')
e('v_lshrrev_b32 v16, 3, v0')
e('v_and_b32 v17, 7, v0')
e('v_lshrrev_b32 v18, 4, v0')
e('s_lshl_b32 s12, s7, 7')
e('s_lshl_b32 s13, s11, 5')
e('s_add_u32 s12, s12, s13')
e('v_add_u32 v16, s12, v16')
e('v_mul_u32_u24 v16, 1280, v16')
e('v_xor_b32 v19, v17, v18')
e('v_xor_b32 v18, 4, v19')
e('v_lshl_add_u32 v20, v19, 4, v16')
e('v_lshl_add_u32 v21, v18, 4, v16')
e('v_add_u32 v21, 10240, v21')
e('v_add_u32 v22, 20480, v20')
e('v_add_u32 v23, 20480, v21')
e('v_lshrrev_b32 v16, 4, v0')
e('v_bfe_u32 v17, v0, 2, 2')
e('v_xor_b32 v17, v17, v16')
e('v_and_b32 v18, 3, v0')
e('s_lshl_b32 s12, s11, 4')
e('v_add_u32 v16, s12, v16')
e('v_mul_u32_u24 v16, 1280, v16')
e('v_lshl_add_u32 v16, v17, 6, v16')
e('v_lshl_add_u32 v16, v18, 4, v16')
e('s_lshl_b32 s12, s8, 8')
e('v_add_u32 v24, s12, v16')
for i in range(1, 4):
    e(f'v_add_u32 v{24+i}, {i*5120}, v24')
e('s_lshl_b32 s12, s11, 12')
e('s_mov_b32 s13, 0')
e('s_mov_b32 s14, 0')
e('s_mov_b32 s15, 0')
srd(36, 16, 17, 2048*640*2)
srd(40, 24, 25, 640*640*2)
def issue1b():
    e('s_add_u32 s34, s15, s12')
    for i in range(4):
        e(f's_add_u32 m0, s34, {i*1024}')
        e('s_nop 0')
        e(f'buffer_load_dwordx4 v{20+i}, s[36:39], s13 offen lds')
    for i in range(4):
        e(f's_add_u32 m0, s34, {16384+i*1024}')
        e('s_nop 0')
        e(f'buffer_load_dwordx4 v{24+i}, s[40:43], s14 offen lds')
    e('s_add_u32 s13, s13, 128')
    e('s_add_u32 s14, s14, 81920')
    e('s_add_u32 s15, s15, 32768')
    e(f's_and_b32 s15, s15, {R1B*32768-1}')
stamp(1)
for c in range(D1B):
    issue1b()
e('s_mov_b32 s35, 0')
e('L1b_ploop:')
issue1b()
e(f's_waitcnt vmcnt({8*D1B})')
e('s_barrier')
e('s_add_u32 s35, s35, 1')
e(f's_cmp_lt_u32 s35, {10-D1B}')
e('s_cbranch_scc1 L1b_ploop')
for k in range(D1B):
    e(f's_waitcnt vmcnt({8*(D1B-1-k)})')
    e('s_barrier')
e('s_barrier')
e('s_branch L2_load')

e('L1b_cons:')
e('s_and_b32 s11, s4, 1')
e('s_lshr_b32 s12, s4, 1')
e('v_and_b32 v16, 31, v0')
e('v_lshrrev_b32 v17, 5, v0')
e('v_bfe_u32 v18, v16, 1, 3')
e('v_xor_b32 v18, v17, v18')
e('s_lshl_b32 s13, s11, 13')
e('v_lshl_add_u32 v19, v16, 7, s13')
for k in range(4):
    e(f'v_xor_b32 v14, {2*k}, v18')
    e(f'v_lshl_add_u32 v{2+k}, v14, 4, v19')
e('v_bfe_u32 v18, v0, 2, 2')
e('v_and_b32 v19, 3, v0')
e('v_bfe_u32 v14, v0, 4, 1')
e('v_lshl_add_u32 v15, v17, 3, v18')
e('v_lshlrev_b32 v15, 8, v15')
e('v_lshl_add_u32 v15, v14, 5, v15')
e('v_lshl_add_u32 v15, v19, 3, v15')
e('v_add_u32 v15, 16384, v15')
e('s_lshl_b32 s13, s12, 1')
for et2 in range(2):
    e(f's_add_u32 s14, s13, {et2}')
    e('v_xor_b32 v14, s14, v18')
    e(f'v_lshl_add_u32 v{6+et2}, v14, 6, v15')
ACB = 16; FB = 80
for i in range(64):
    e(f'v_mov_b32 v{ACB+i}, 0')
for i in range(64):
    e(f'v_mov_b32 v{FB+64+i}, 0')
srd(44, 32, 33, XR_BYTES, XR_OFF)
e('s_mov_b32 s14, 0')
e('s_mov_b32 s15, 0')
def c1b_reads(u):
    out = []
    for k in range(4):
        b = FB + 64*u + k*16
        for mt2 in range(2):
            out.append(f'ds_read_b128 v[{b+mt2*4}:{b+mt2*4+3}], v{8+k} offset:{mt2*4096}')
        for et2 in range(2):
            for t in range(2):
                r = b + 8 + et2*4 + 2*t
                out.append(f'ds_read_b64_tr_b16 v[{r}:{r+1}], v{12+et2} offset:{k*4096 + t*1024}')
    return out
def c1b_mfmas(u):
    out = []
    for k in range(4):
        b = FB + 64*u + k*16
        for et2 in range(2):
            for mt2 in range(2):
                c = ACB + (et2*2+mt2)*16
                out.append(f'v_mfma_f32_32x32x16_bf16 v[{c}:{c+15}], v[{b+8+et2*4}:{b+8+et2*4+3}], v[{b+mt2*4}:{b+mt2*4+3}], v[{c}:{c+15}]')
    return out
e('L1b_cloop:')
for u in range(2):
    e('s_barrier')
    stamp('s70')
    for k in range(4):
        e(f'v_add_u32 v{8+k}, s14, v{2+k}')
    for et2 in range(2):
        e(f'v_add_u32 v{12+et2}, s14, v{6+et2}')
    e('s_add_u32 s14, s14, 32768')
    e(f's_and_b32 s14, s14, {R1B*32768-1}')
    interleave(c1b_reads(u), c1b_mfmas(1-u), 2)
    if u == 0:
        e('s_waitcnt vmcnt(0)')
    else:
        e('s_or_b32 s13, s15, s4')
        e('s_cmp_lg_u32 s13, 0')
        e('s_cbranch_scc1 L1b_nhs')
        e(f's_mov_b32 s{HS+12}, s14')
        e('v_mov_b32 v212, 0')
        e('v_mov_b32 v213, 1')
        srd(48, 30, 31, 256)
        stamp(22)
        helper_signal(0, 1, 212, 213)
        e(f's_mov_b32 s14, s{HS+12}')
        e('L1b_nhs:')
    e('s_waitcnt lgkmcnt(0)')
e('s_add_u32 s15, s15, 1')
e('s_cmp_lt_u32 s15, 5')
e('s_cbranch_scc1 L1b_cloop')
init_probe()
e('s_barrier')
for m in c1b_mfmas(1): e(m)
e('v_lshlrev_b32 v1, 4, v0')
e('s_lshl_b32 s13, s7, 2')
e('s_lshl_b32 s14, s11, 1')
e('s_add_u32 s13, s13, s14')
e('s_mul_i32 s13, s13, 20')
e('s_lshl_b32 s14, s8, 2')
e('s_add_u32 s13, s13, s14')
e('s_lshl_b32 s14, s12, 1')
e('s_add_u32 s13, s13, s14')
e('s_lshl_b32 s13, s13, 11')
e('s_add_u32 s14, s13, 40960')
e('s_nop 3')
for et2 in range(2):
    for mt2 in range(2):
        c = ACB + (et2*2+mt2)*16
        for t in range(2):
            r = FB + ((et2*2+mt2)*2+t)*4
            for d in range(4):
                e(f'v_cvt_pk_bf16_f32 v{r+d}, v{c+8*t+2*d}, v{c+8*t+2*d+1}')
            e(f'buffer_store_dwordx4 v[{r}:{r+3}], v1, s[44:47], s{13+mt2} offen offset:{et2*2048 + t*1024} sc1')
signal('x', 7)

def decode2():
    e('s_lshr_b32 s7, s5, 1')
    e('s_lshl_b32 s7, s7, 2')
    e('s_and_b32 s8, s6, 3')
    e('s_add_u32 s7, s7, s8')
    e('s_and_b32 s8, s5, 1')
    e('s_lshl_b32 s8, s8, 3')
    e('s_lshr_b32 s9, s6, 2')
    e('s_add_u32 s8, s8, s9')
    e('v_lshlrev_b32 v1, 4, v0')
    e('v_mov_b32 v3, 0')
    srd(48, 32, 33, 256*128, FLAG_OFF)
    e('s_lshl_b32 s13, s2, 7')
e('L2_comp:')
if opt('PRP', 0) or opt('PRC', 0): e('s_setprio 0')
stamp(40)
decode2()
e('v_add_u32 v2, 0x10000, v1')
srd(36, 32, 33, XR_BYTES, XR_OFF)
srd(44, 28, 29, 2048*1536*2)
e('s_lshl_b32 s9, s7, 2')
e('s_add_u32 s9, s9, s4')
e('s_mul_i32 s10, s9, 40960')
e('s_cmp_lg_u32 s4, 0')
e('s_cbranch_scc1 L2_xwait')
e(f's_cmp_lg_u32 s{HS+14}, 0')
e('s_cbranch_scc1 L2_iok')
srd(56, 30, 31, 256)
spin('L2_ichk', 56, 3, '0', 96)
e('L2_iok:')
spin('L2_pollx', 48, 3, 's13', 5)
e('L2_xwait:')
e('s_waitcnt vmcnt(0)')
e('s_barrier')
stamp(41)
XB = 8; AC2 = 168; TB = 216; NB = 3
XP = opt('XP', 4)
def xr_loads(c):
    out = []
    for i in range(4):
        r = XB + (4*c+i)*4
        out.append(([f's_add_u32 s14, s10, {c*4096}'] if i == 0 else []) + [f'buffer_load_dwordx4 v[{r}:{r+3}], v1, s[36:39], s14 offen offset:{i*1024} sc1'])
    return out
for c in range(XP):
    for g in xr_loads(c):
        for x in g: e(x)
stamp(42)
issued = XP
pending = []
def rd2(s):
    global issued, pending
    if s % 4 == 0:
        c = s // 4
        for g in pending:
            for x in g: e(x)
        pending = []
        e(f's_waitcnt vmcnt({4*(issued-c-1)})')
        e('s_barrier')
        stamp(43+c)
        if issued < 10:
            pending = xr_loads(issued)
            issued += 1
    for gb in range(3):
        r = TB + ((s % NB)*3 + gb)*4
        off = (gb*40 + s)*1024
        if off < 65536:
            e(f'ds_read_b128 v[{r}:{r+3}], v1 offset:{off}')
        else:
            e(f'ds_read_b128 v[{r}:{r+3}], v2 offset:{off-65536}')
rd2(0); rd2(1)
for s in range(40):
    e(f's_waitcnt lgkmcnt({3 if s < 39 else 0})')
    for gb in range(3):
        r = TB + ((s % NB)*3 + gb)*4
        x = XB + s*4
        a = AC2 + gb*16
        cc = '0' if s == 0 else f'v[{a}:{a+15}]'
        e(f'v_mfma_f32_32x32x16_bf16 v[{a}:{a+15}], v[{r}:{r+3}], v[{x}:{x+3}], {cc}')
        if gb == 0 and s + 2 < 40: rd2(s + 2)
        elif pending:
            for x_ in pending.pop(0): e(x_)
stamp(54)
e('v_and_b32 v3, 31, v0')
e('v_lshrrev_b32 v4, 5, v0')
e('s_lshl_b32 s9, s9, 5')
e('v_add_u32 v3, s9, v3')
e('v_mul_u32_u24 v3, 3072, v3')
e('v_lshl_add_u32 v3, v4, 4, v3')
e('s_mul_i32 s12, s8, 192')
e('s_nop 7')
for gb in range(3):
    a = AC2 + gb*16
    w = 8 + gb*8
    for d in range(8):
        e(f'v_cvt_pk_bf16_f32 v{w+d}, v{a+2*d}, v{a+2*d+1}')
    e('s_nop 1')
    for jp in range(2):
        e(f'v_permlane32_swap_b32 v{w+4*jp}, v{w+4*jp+2}')
        e(f'v_permlane32_swap_b32 v{w+4*jp+1}, v{w+4*jp+3}')
    for jp in range(2):
        e(f'buffer_store_dwordx4 v[{w+4*jp}:{w+4*jp+3}], v3, s[44:47], s12 offen offset:{gb*64 + jp*32}{YSF}')
stamp_flush()
e('s_endpgm')

e('L2_load:')
if opt('PRP', 0) or opt('PRC', 0): e('s_setprio 0')
e('s_cmp_lg_u32 s4, 4')
e('s_cbranch_scc1 L_end')
stamp(40)
decode2()
e('s_mul_i32 s12, s8, 122880')
e(f's_add_u32 s12, s12, {T2_OFF}')
e('s_add_u32 s40, s32, s12')
e('s_addc_u32 s41, s33, 0')
e('s_and_b32 s41, s41, 0xffff')
e('s_mov_b32 s42, 122880')
e('s_mov_b32 s43, 0x00020000')
e('s_barrier')
spin('L2_pollt', 48, 3, 's13', 10, ' offset:4')
stamp(41)
TP = opt('TP', 3)
def t2_loads(c):
    for gb in range(3):
        e(f's_mov_b32 s12, {(gb*40 + 4*c)*1024}')
        e('s_mov_b32 m0, s12')
        e('s_nop 0')
        for k in range(4):
            e(f'buffer_load_dwordx4 v1, s[40:43], s12 offen offset:{k*1024} sc1 lds')
for c in range(TP):
    t2_loads(c)
stamp(42)
for c in range(10):
    e(f's_waitcnt vmcnt({12*(min(10, c+TP)-c-1)})')
    e('s_barrier')
    if c + TP < 10: t2_loads(c + TP)
stamp_flush()
e('L_end:')
e('s_endpgm')

e('.section .rodata,"a"')
e('.p2align 6')
e(f'.amdhsa_kernel {K}')
L.append('  .amdhsa_next_free_vgpr 256')
L.append(f'  .amdhsa_next_free_sgpr {96 if PROF else 80}')
L.append('  .amdhsa_accum_offset 256')
L.append('  .amdhsa_group_segment_fixed_size 0')
L.append('  .amdhsa_float_denorm_mode_32 3')
L.append('  .amdhsa_kernarg_size 72')
L.append('  .amdhsa_user_sgpr_count 2')
L.append('  .amdhsa_user_sgpr_kernarg_segment_ptr 1')
L.append('  .amdhsa_system_sgpr_workgroup_id_x 1')
e('.end_amdhsa_kernel')
open(OUT, 'w').write('\n'.join(L) + '\n')
print('wrote', OUT, len(L), 'lines; LDS', LDS)
```
